```python
import torch

def _softmax(x, axis=-1):
    return torch.softmax(x, dim=axis)

def _gelu(x):
    return torch.nn.functional.gelu(x, approximate='tanh')

def _silu(x):
    return torch.nn.functional.silu(x)

def _sigmoid(x):
    return torch.sigmoid(x)

def _layernorm(x, axis=-1, eps=1e-05):
    m = x.mean(dim=axis, keepdim=True)
    v = x.var(dim=axis, keepdim=True, unbiased=False)
    return (x - m) / torch.sqrt(v + eps)

def _scatter_add(tgt, idx, src, axis=0):
    return tgt.clone().index_add_(axis, idx, src)

def _segment_sum(src, seg, n):
    out = torch.zeros((n,) + src.shape[1:], dtype=src.dtype)
    return out.index_add_(0, seg, src)

def _pad(x, pw):
    flat = tuple((v for pair in reversed(pw) for v in pair))
    return torch.nn.functional.pad(x, flat)
kernel_name = 'adaLN_cond__linear_kernel_hedgehog__glu_gated_reglu__prompt'

def setup_inputs():

    _w = lambda a: (lambda t: t.to(torch.bfloat16) if t.is_floating_point() else t)(torch.as_tensor(a))

    def _A_setup():
        B, S, D, H = (1, 2048, 512, 32)
        Dh = D // H
        return {'x': _w((lambda *s: torch.randn(*s, dtype=torch.bfloat16) * 0.05)(B, S, D)), 'wqkv': _w((lambda *s: torch.randn(*s, dtype=torch.bfloat16) * 0.4)(D, 3 * D)), 'w_phi': _w((lambda *s: torch.randn(*s, dtype=torch.bfloat16) * 0.4)(H, Dh, Dh) * Dh ** (-0.5)), 'wo': _w((lambda *s: torch.randn(*s, dtype=torch.bfloat16) * 0.05)(D, D))}
    _A_in = _A_setup()

    def _B_setup():
        B, S, D, F = (1, 2048, 512, 1792)
        return {'x': _w((lambda *s: torch.randn(*s, dtype=torch.bfloat16) * 0.05)(B, S, D)), 'W_gate': _w((lambda *s: torch.randn(*s, dtype=torch.bfloat16) * 0.8)(D, F) * (2.0 / D) ** 0.5), 'W_up': _w((lambda *s: torch.randn(*s, dtype=torch.bfloat16) * 0.8)(D, F) * (2.0 / D) ** 0.5), 'W_down': _w((lambda *s: torch.randn(*s, dtype=torch.bfloat16) * 0.8)(F, D) * (1.0 / F) ** 0.5)}
    _B_in = _B_setup()
    return {'A_x': _A_in['x'], 'A_wqkv': _A_in['wqkv'], 'A_w_phi': _A_in['w_phi'], 'A_wo': _A_in['wo'], 'B_x': _B_in['x'], 'B_W_gate': _B_in['W_gate'], 'B_W_up': _B_in['W_up'], 'B_W_down': _B_in['W_down'], 'c': _w((lambda *s: torch.randn(*s, dtype=torch.bfloat16) * 0.2)(1, 512) * 8.0), 'w_mod': _w((lambda *s: torch.randn(*s, dtype=torch.bfloat16) * 0.2)(512, 6 * 512) * 512 ** (-0.5) * 8.0)}

def reference(A_x, A_wqkv, A_w_phi, A_wo, B_x, B_W_gate, B_W_up, B_W_down, c, w_mod):

    def _A_ref(x, wqkv, w_phi, wo):
        B, S, D = x.shape
        H = 32
        Dh = D // H
        qkv = (lambda x, *d: x.permute(*d))((x @ wqkv).reshape(B, S, 3, H, Dh), 2, 0, 3, 1, 4)
        q, k, v = (qkv[0], qkv[1], qkv[2])
        pq = torch.einsum('bhsd,hdf->bhsf', q, w_phi)
        pk = torch.einsum('bhsd,hdf->bhsf', k, w_phi)
        phi_q = torch.concatenate([_softmax(pq, axis=-1), _softmax(-pq, axis=-1)], axis=-1)
        phi_k = torch.concatenate([_softmax(pk, axis=-1), _softmax(-pk, axis=-1)], axis=-1)
        kv = torch.einsum('bhsf,bhsd->bhfd', phi_k, v)
        z = torch.einsum('bhsf->bhf', phi_k)
        num = torch.einsum('bhqf,bhfd->bhqd', phi_q, kv)
        den = torch.einsum('bhqf,bhf->bhq', phi_q, z)[..., None] + 1e-06
        o = num / den
        return (lambda x, *d: x.permute(*d))(o, 0, 2, 1, 3).reshape(B, S, D) @ wo

    def _B_ref(x, W_gate, W_up, W_down):
        gate = torch.einsum('bsd,df->bsf', x, W_gate)
        up = torch.einsum('bsd,df->bsf', x, W_up)
        gate = gate * (lambda x, dt: x.to(dt))(gate > 0, gate.dtype)
        h = gate * up
        return torch.einsum('bsf,fd->bsd', h, W_down)
    x = A_x
    mod = (_silu(c) @ w_mod).reshape(c.shape[0], 6, 1, -1)
    sa, ca, ga, sb, cb, gb = (mod[:, 0].clone(), mod[:, 1].clone(), mod[:, 2].clone(), mod[:, 3].clone(), mod[:, 4].clone(), mod[:, 5].clone())
    h = _layernorm(x, axis=-1) * (1 + ca) + sa
    x = x + ga * _A_ref(h, A_wqkv, A_w_phi, A_wo)
    h = _layernorm(x, axis=-1) * (1 + cb) + sb
    x = x + gb * _B_ref(h, B_W_gate, B_W_up, B_W_down)
    return x
```

```python
import re

REG_RE = re.compile(r'^(-?)(\|?)(abs\()?([vas])(\d+|\[(\d+):(\d+)\])\)?\|?$')

def regs_of(tok):
    tok = tok.strip()
    if tok in ('vcc',):
        return [('s', 'vcc')]
    if tok in ('vcc_lo', 'vcc_hi'):
        return [('s', 'vcc')]
    if tok == 'exec':
        return [('s', 'exec')]
    if tok == 'm0':
        return [('s', 'm0')]
    m = REG_RE.match(tok)
    if not m:
        return []
    kind = m.group(4)
    if m.group(6) is not None:
        return [(kind, i) for i in range(int(m.group(6)), int(m.group(7)) + 1)]
    return [(kind, int(m.group(5)))]

TRANS = ('v_exp_f32', 'v_log_f32', 'v_rcp_f32', 'v_rsq_f32', 'v_sqrt_f32', 'v_sin_f32', 'v_cos_f32', 'v_rcp_iflag_f32')
RMW_DST = ('v_fmac_f32', 'v_dot2c_f32_bf16', 'v_pk_fmac', 'v_mac_f32', 'v_fmac_f32_dpp', 'v_dot2c_f32_bf16_dpp', 'v_writelane_b32')

class Ins:
    __slots__ = ('text', 'op', 'kind', 'wr', 'rd', 'passes', 'dpp', 'srcc', 'states', 'wide_store', 'lds_dma', 'partial')
    def __init__(self, text):
        self.text = text
        body = text.split(';')[0].strip()
        parts = body.split(None, 1)
        self.op = parts[0]
        rest = parts[1] if len(parts) > 1 else ''
        ops = []
        mods = ''
        depth = 0; cur = ''
        for ch in rest:
            if ch == '[': depth += 1
            if ch == ']': depth -= 1
            if ch == ',' and depth == 0:
                ops.append(cur.strip()); cur = ''
            else:
                cur += ch
        if cur.strip():
            last = cur.strip().split(None, 1)
            ops.append(last[0])
            mods = last[1] if len(last) > 1 else ''
        op = self.op
        self.wr = []; self.rd = []; self.passes = 0; self.srcc = []
        self.dpp = ('_dpp' in op) or ('row_' in mods) or ('quad_perm' in mods)
        self.states = 1; self.wide_store = False; self.lds_dma = False; self.partial = False
        R = lambda i: regs_of(ops[i]) if i < len(ops) else []
        allrd = lambda start: [r for i in range(start, len(ops)) for r in regs_of(ops[i])]
        if op == 's_nop':
            self.kind = 'nop'; self.states = int(ops[0], 0) + 1
        elif op.startswith('v_mfma'):
            self.kind = 'mfma'
            self.passes = 8 if '32x32x16' in op or '32x32x8' in op else 4
            self.wr = R(0); self.rd = allrd(1); self.srcc = R(3)
        elif op.startswith('v_cmp'):
            self.kind = 'valu'; self.wr = R(0); self.rd = allrd(1)
            if op.startswith('v_cmpx'):
                raise ValueError('v_cmpx is not modelled')
        elif op in ('v_readfirstlane_b32', 'v_readlane_b32'):
            self.kind = 'readlane'; self.wr = R(0); self.rd = allrd(1)
        elif op.startswith('v_permlane'):
            self.kind = 'permlane'; self.wr = R(0) + R(1); self.rd = R(0) + R(1)
        elif op.startswith('v_add_co') or op.startswith('v_sub_co') or op.startswith('v_addc_co'):
            self.kind = 'valu'; self.wr = R(0) + R(1); self.rd = allrd(2)
        elif op.startswith('v_'):
            base = op.replace('_e32', '').replace('_e64', '')
            self.kind = 'trans' if base in TRANS else 'valu'
            self.wr = R(0); self.rd = allrd(1)
            if base in RMW_DST or (self.dpp and ('row_mask' in mods and '0xf' not in mods.split('row_mask:')[1][:3])):
                self.rd = self.rd + R(0)
            if base.startswith('v_cndmask') and len(ops) == 3:
                self.rd = self.rd + [('s', 'vcc')]
        elif op.startswith('ds_'):
            self.kind = 'ds'
            if op.startswith('ds_read') or op.startswith('ds_bpermute') or op.startswith('ds_swizzle') or op.startswith('ds_permute'):
                self.wr = R(0); self.rd = allrd(1)
            else:
                self.rd = allrd(0)
        elif op.startswith('buffer_') or op.startswith('global_'):
            self.kind = 'vmem'
            toks = mods.split()
            if op in ('buffer_inv', 'buffer_wbl2'):
                pass
            elif 'lds' in toks or '_lds_' in op:
                self.lds_dma = True; self.rd = allrd(0) + [('s', 'm0')]
            elif 'load' in op:
                self.wr = R(0); self.rd = allrd(1)
            elif 'atomic' in op and 'sc0' in toks:
                self.wr = R(0); self.rd = allrd(0)
            else:
                self.rd = allrd(0)
                self.wide_store = ('x3' in op or 'x4' in op)
                if self.wide_store:
                    self.srcc = R(0) if op.startswith('buffer_') else R(1)
        elif op.startswith('s_load') or op.startswith('s_buffer_load') or op in ('s_memtime', 's_memrealtime'):
            self.kind = 'smem'; self.wr = R(0); self.rd = allrd(1)
        elif op.startswith('s_waitcnt') or op in ('s_barrier', 's_endpgm', 's_setprio', 's_sleep') or op.startswith('s_cbranch') or op == 's_branch':
            self.kind = 'ctl'
        elif op.startswith('s_cmp') or op.startswith('s_bitcmp'):
            self.kind = 'salu'; self.rd = allrd(0)
        elif op.startswith('s_'):
            self.kind = 'salu'; self.wr = R(0); self.rd = allrd(1)
            if 'saveexec' in op:
                self.wr = self.wr + [('s', 'exec')]
        else:
            raise ValueError('unknown instruction: ' + text)

def is_valu(i):
    return i.kind in ('valu', 'trans', 'readlane', 'permlane')

def required_gap(p, c):
    need = 0
    pw = set(p.wr);
    cr = set(c.rd); cw = set(c.wr)
    pwv = {r for r in pw if r[0] in 'va'}
    pws = {r for r in pw if r[0] == 's'}
    if is_valu(p):
        if pwv & cr:
            if c.kind == 'mfma': need = max(need, 2)
            if c.dpp: need = max(need, 2)
            if c.kind == 'permlane': need = max(need, 2)
            if c.kind == 'readlane': need = max(need, 1)
            if p.kind == 'trans' and is_valu(c): need = max(need, 1)
        if pws & cr:
            if c.kind == 'vmem': need = max(need, 5)
            if is_valu(c): need = max(need, 4 if c.kind == 'readlane' else 2)
            if c.kind in ('salu', 'smem'): need = max(need, 4)
        if pws and c.kind == 'ctl' and c.op.startswith('s_cbranch_vcc') and ('s', 'vcc') in pws:
            need = max(need, 5)
    if p.kind == 'mfma':
        n = p.passes
        raw = 12 if n == 8 else 8
        if c.kind == 'mfma':
            csrc = set(c.srcc)
            ab = set(c.rd) - csrc if csrc else set(c.rd)
            abregs = set()
            if pw & csrc:
                if not (csrc == pw and c.passes == p.passes):
                    need = max(need, 10 if n == 8 else 6)
            rd_ab = [r for r in c.rd if r not in csrc]
            if pw & set(rd_ab): need = max(need, raw)
            if (pw & cw) and not (pw & csrc): need = max(need, raw)
        else:
            if (pw & cr) or (pw & cw):
                need = max(need, raw)
        if is_valu(c) and (set(p.srcc) & cw):
            need = max(need, 7 if n == 8 else 3)
    if p.kind == 'vmem' and p.wide_store and (set(p.srcc) & cw):
        need = max(need, 2)
    if p.kind == 'salu' and ('s', 'm0') in pws and c.lds_dma:
        need = max(need, 1)
    return need

class Asm:
    def __init__(self):
        self.items = []
        self.vm = []
        self.lg = []
        self.smem_out = False
        self.nlabel = 0
        self.nops_inserted = 0

    def raw(self, s):
        self.items.append(s)

    def label(self, name):
        self.items.append(name + ':')

    def newlabel(self, base):
        self.nlabel += 1
        return f'{base}_{self.nlabel}'

    def c(self, s):
        self.items.append('; ' + s)

    def _pad(self, ins):
        dist = 0; need = 0
        for it in reversed(self.items):
            if isinstance(it, str):
                continue
            g = required_gap(it, ins)
            if g > dist:
                need = max(need, g - dist)
            dist += it.states
            if dist >= 13:
                break
        while need > 0:
            k = min(need, 16)
            self.items.append(Ins(f's_nop {k-1}'))
            self.nops_inserted += k
            need -= k

    def I(self, text, tag=None):
        for line in text.split('\n'):
            line = line.strip()
            if not line:
                continue
            ins = Ins(line)
            self._pad(ins)
            self.items.append(ins)
            if ins.kind == 'vmem' and ins.op not in ('buffer_inv',):
                self.vm.append(tag)
            elif ins.kind == 'ds':
                self.lg.append(tag)
            elif ins.kind == 'smem':
                self.smem_out = True

    def wait_vm(self, tag=None):
        if tag is None:
            n = 0
        else:
            idx = [i for i, t in enumerate(self.vm) if t == tag]
            if not idx:
                return
            n = len(self.vm) - 1 - idx[-1]
        assert n <= 63, n
        self.vm = self.vm[len(self.vm) - n:] if n else []
        self.I(f's_waitcnt vmcnt({n})')

    def wait_vm_n(self, n):
        assert n <= 63
        if len(self.vm) > n:
            self.vm = self.vm[len(self.vm) - n:] if n else []
        self.I(f's_waitcnt vmcnt({n})')

    def wait_lg(self, tag=None):
        if tag is None or self.smem_out:
            n = 0
        else:
            idx = [i for i, t in enumerate(self.lg) if t == tag]
            if not idx:
                return
            n = len(self.lg) - 1 - idx[-1]
        if n > 15:
            n = 15
        self.lg = self.lg[len(self.lg) - n:] if n else []
        if n == 0:
            self.smem_out = False
        self.I(f's_waitcnt lgkmcnt({n})')

    def wait_all(self):
        self.vm = []; self.lg = []; self.smem_out = False
        self.I('s_waitcnt vmcnt(0) lgkmcnt(0)')

    def flush_hazards(self):
        worst = 0; dist = 0
        for it in reversed(self.items):
            if isinstance(it, str):
                continue
            g = 0
            if it.kind == 'mfma': g = 12 if it.passes == 8 else 8
            elif is_valu(it): g = 5 if any(r[0] == 's' for r in it.wr) else 2
            elif it.kind == 'vmem' and it.wide_store: g = 2
            elif it.kind == 'salu' and ('s', 'm0') in it.wr: g = 1
            if g > dist:
                worst = max(worst, g - dist)
            dist += it.states
            if dist >= 13:
                break
        if worst:
            self.items.append(Ins(f's_nop {worst-1}'))

    def text(self):
        out = []
        for it in self.items:
            if isinstance(it, str):
                out.append(it)
            else:
                out.append('    ' + it.text)
        return '\n'.join(out) + '\n'

def v(i, n=1):
    return f'v{i}' if n == 1 else f'v[{i}:{i+n-1}]'
def a(i, n=1):
    return f'a{i}' if n == 1 else f'a[{i}:{i+n-1}]'
def s(i, n=1):
    return f's{i}' if n == 1 else f's[{i}:{i+n-1}]'
```

```python
from asmlib import *

XH    = 0x000000
WF1   = 0x200000
MODV  = 0x380000
MODB  = 0x384000
GS    = 0x388000
PHIW  = 0x390000
ZERO  = 0x3A0000
KVF   = ZERO
UT    = ZERO + 73728
PQ    = 0x400000
X1    = 0x800000
A2    = 0xA00000
STATS = 0xC00000
WF4   = 0xD00000
HID   = 0x1100000
WS_BYTES = 0x1800000

KA = dict(x=0, wqkv=8, wphi=16, wo=24, bx=32, wg=40, wu=48, wd=56, c=64, wmod=72, out=80, dbg=88, ws=96)
NBYTES = dict(x=2048*512*2, wqkv=512*1536*2, wphi=32*256*2, wo=512*512*2, wg=512*1792*2, wu=512*1792*2,
              wd=1792*512*2, c=1024, wmod=512*3072*2, out=2048*512*2, ws=WS_BYTES, dbg=256)

LOG2E = 0x3fb8aa3b

class Kern:
    def __init__(self, name, grid, lds, vgprs, agprs=0, sgprs=100):
        self.name = name; self.grid = grid; self.lds = lds
        self.vgprs = vgprs; self.agprs = agprs; self.sgprs = sgprs
        self.A = Asm()

    def begin(self):
        A = self.A
        A.raw(f'.globl {self.name}\n.p2align 8\n.type {self.name},@function\n{self.name}:')
        A.I(f's_cmp_ge_u32 s2, {self.grid}')
        A.I(f's_cbranch_scc1 {self.name}_end')

    def end(self):
        A = self.A
        A.label(f'{self.name}_end')
        A.I('s_endpgm')

    def descriptor(self):
        acc = (self.vgprs + 3) // 4 * 4
        if self.agprs:
            nfv = acc + self.agprs
        else:
            nfv = self.vgprs
        return (f'.amdhsa_kernel {self.name}\n'
                f'  .amdhsa_next_free_vgpr {nfv}\n'
                f'  .amdhsa_next_free_sgpr {self.sgprs}\n'
                f'  .amdhsa_accum_offset {acc}\n'
                f'  .amdhsa_group_segment_fixed_size 0\n'
                f'  .amdhsa_kernarg_size 104\n'
                f'  .amdhsa_user_sgpr_count 2\n'
                f'  .amdhsa_user_sgpr_kernarg_segment_ptr 1\n'
                f'  .amdhsa_system_sgpr_workgroup_id_x 1\n'
                f'  .amdhsa_float_denorm_mode_32 3\n'
                f'.end_amdhsa_kernel\n')

def load_ptrs(A, names, first):
    out = {}
    r = first
    for n in names:
        A.I(f's_load_dwordx2 {s(r,2)}, s[0:1], {KA[n]}')
        out[n] = r
        r += 2
    return out

def make_srd(A, dst, ptr, nbytes):
    A.I(f's_mov_b32 s{dst}, s{ptr}')
    A.I(f's_and_b32 s{dst+1}, s{ptr+1}, 0xffff')
    A.I(f's_mov_b32 s{dst+2}, {nbytes}')
    A.I(f's_mov_b32 s{dst+3}, 0x20000')

def srd(r):
    return s(r, 4)

def wave_id(A, sdst, vtmp):
    A.I(f'v_lshrrev_b32 {v(vtmp)}, 6, v0')
    A.I(f'v_readfirstlane_b32 s{sdst}, {v(vtmp)}')

def round_bf16_to_f32(A, dst, src):
    A.I(f'v_cvt_pk_bf16_f32 {v(dst)}, {v(src)}, {v(src)}')
    A.I(f'v_lshlrev_b32 {v(dst)}, 16, {v(dst)}')
```

```python
from common import *

def gen_k0():
    K = Kern('k0_kernel', 256, lds=32768, vgprs=112)
    A = K.A
    K.begin()
    P = load_ptrs(A, ['x', 'wqkv', 'wphi', 'c', 'wmod', 'ws'], 4)
    SW = 16
    wave_id(A, SW, 1)
    A.I('v_and_b32 v1, 63, v0')
    A.wait_lg()
    WS = 20
    make_srd(A, WS, P['ws'], NBYTES['ws'])
    A.I('s_cmp_lt_u32 s2, 48');  A.I('s_cbranch_scc1 k0_mod')
    A.I('s_cmp_lt_u32 s2, 64');  A.I('s_cbranch_scc1 k0_misc')
    A.I('s_cmp_lt_u32 s2, 192'); A.I('s_cbranch_scc1 k0_xh')
    A.I('s_branch k0_wf1')

    A.label('k0_mod')
    make_srd(A, 24, P['c'], NBYTES['c'])
    make_srd(A, 28, P['wmod'], NBYTES['wmod'])
    A.I('v_lshlrev_b32 v2, 2, v0')
    A.I(f'buffer_load_dword v3, v2, {srd(24)}, 0 offen', tag='c')
    A.I('v_lshrrev_b32 v4, 3, v1')
    A.I('v_and_b32 v5, 7, v1')
    A.I('v_mul_u32_u24 v6, 6144, v4')
    A.I('v_lshl_add_u32 v6, v5, 4, v6')
    A.I(f's_mul_i32 s32, s{SW}, {128*6144}')
    A.I('s_lshl_b32 s33, s2, 7')
    A.I('s_add_u32 s32, s32, s33')
    WB = 48
    for i in range(16):
        A.I(f'buffer_load_dwordx4 {v(WB+4*i,4)}, v6, {srd(28)}, s32 offen', tag=f'w{i}')
        if i < 15:
            A.I('s_add_u32 s32, s32, 49152')
    A.I('v_lshrrev_b32 v7, 6, v0')
    A.I('v_lshlrev_b32 v7, 7, v7')
    A.I('v_lshlrev_b32 v8, 1, v0')
    A.I('v_and_b32 v8, 7, v8')
    A.I('v_lshl_add_u32 v7, v8, 4, v7')
    A.I('v_lshrrev_b32 v8, 2, v0')
    A.I('v_and_b32 v8, 15, v8')
    A.I('v_add_lshl_u32 v7, v7, v8, 2')
    A.wait_vm('c')
    A.I('v_lshlrev_b32 v8, 16, v3')
    A.I('v_and_b32 v9, 0xffff0000, v3')
    for r in (8, 9):
        A.I(f'v_mul_f32 v{r+2}, 0xbfb8aa3b, v{r}')
    for r in (8, 9):
        A.I(f'v_exp_f32 v{r+2}, v{r+2}')
    for r in (8, 9):
        A.I(f'v_add_f32 v{r+2}, 1.0, v{r+2}')
    for r in (8, 9):
        A.I(f'v_rcp_f32 v{r+2}, v{r+2}')
    for r in (8, 9):
        A.I(f'v_mul_f32 v{r}, v{r}, v{r+2}')
    A.I('v_cvt_pk_bf16_f32 v10, v8, v9')
    A.I('v_lshlrev_b32 v8, 16, v10')
    A.I('v_and_b32 v9, 0xffff0000, v10')
    A.I('ds_write_b32 v7, v8')
    A.I('ds_write_b32 v7, v9 offset:64')
    A.wait_lg()
    A.I('s_barrier')
    A.I(f's_lshl_b32 s33, s{SW}, 9')
    A.I('v_lshlrev_b32 v7, 6, v4')
    A.I('v_add_u32 v7, s33, v7')
    SV = 16
    for q in range(4):
        A.I(f'ds_read_b128 {v(SV+4*q,4)}, v7 offset:{16*q}')
    ACC = 32
    for d in range(8):
        A.I(f'v_mov_b32 {v(ACC+d)}, 0')
    A.wait_lg()
    for i in range(16):
        A.I(f'v_lshrrev_b32 v8, 16, {v(SV+i)}')
        A.wait_vm(f'w{i}')
        for d in range(4):
            A.I(f'v_dot2c_f32_bf16 {v(ACC+2*d)}, {v(WB+4*i+d)}, v8')
            A.I(f'v_dot2c_f32_bf16 {v(ACC+2*d+1)}, {v(WB+4*i+d)}, {v(SV+i)}')
    for q in range(4):
        A.I(f'v_permlane32_swap_b32 {v(ACC+q)}, {v(ACC+q+4)}')
    for q in range(4):
        A.I(f'v_add_f32 {v(ACC+q)}, {v(ACC+q)}, {v(ACC+q+4)}')
    for q in range(2):
        A.I(f'v_permlane16_swap_b32 {v(ACC+q)}, {v(ACC+q+2)}')
    for q in range(2):
        A.I(f'v_add_f32 {v(ACC+q)}, {v(ACC+q)}, {v(ACC+q+2)}')
    A.I('v_and_b32 v8, 8, v1')
    A.I('v_cmp_ne_u32 vcc, 0, v8')
    A.I(f'v_cndmask_b32 v9, {v(ACC)}, {v(ACC+1)}, vcc')
    A.I(f'v_cndmask_b32 v10, {v(ACC+1)}, {v(ACC)}, vcc')
    A.I('v_add_f32_dpp v9, v10, v9 row_ror:8 row_mask:0xf bank_mask:0xf')
    A.I('v_lshlrev_b32 v10, 3, v5')
    A.I('v_bfe_u32 v11, v1, 3, 1');  A.I('v_add_u32 v10, v10, v11')
    A.I('v_bfe_u32 v11, v1, 4, 1');  A.I('v_lshl_add_u32 v10, v11, 1, v10')
    A.I('v_bfe_u32 v11, v1, 5, 1');  A.I('v_lshl_add_u32 v10, v11, 2, v10')
    A.I(f's_lshl_b32 s33, s{SW}, 8')
    A.I('v_lshlrev_b32 v10, 2, v10')
    A.I('v_add_u32 v10, s33, v10')
    A.I('ds_write_b32 v10, v9 offset:4096')
    A.wait_lg()
    A.I('s_barrier')
    A.I(f's_cmp_lg_u32 s{SW}, 0')
    A.I('s_cbranch_scc1 k0_kernel_end')
    A.I('v_lshlrev_b32 v7, 2, v1')
    for q in range(4):
        A.I(f'ds_read_b32 {v(12+q)}, v7 offset:{4096+256*q}')
    A.wait_lg()
    A.I('v_add_f32 v12, v12, v13')
    A.I('v_add_f32 v14, v14, v15')
    A.I('v_add_f32 v12, v12, v14')
    round_bf16_to_f32(A, 12, 12)
    A.I('s_lshr_b32 s33, s2, 3')
    A.I('s_cmp_eq_u32 s33, 1'); A.I('s_cbranch_scc1 k0_mod_add1')
    A.I('s_cmp_eq_u32 s33, 4'); A.I('s_cbranch_scc1 k0_mod_add1')
    A.I('s_branch k0_mod_st')
    A.label('k0_mod_add1')
    A.I('v_add_f32 v12, 1.0, v12')
    round_bf16_to_f32(A, 12, 12)
    A.label('k0_mod_st')
    A.flush_hazards()
    A.I('s_lshl_b32 s34, s2, 6')
    A.I('v_add_u32 v13, s34, v1')
    A.I('v_lshlrev_b32 v14, 2, v13')
    A.I(f's_mov_b32 s35, {MODV}')
    A.I(f'buffer_store_dword v12, v14, {srd(WS)}, s35 offen')
    A.I('v_lshrrev_b32 v15, 16, v12')
    A.I('v_lshlrev_b32 v14, 1, v13')
    A.I(f's_mov_b32 s35, {MODB}')
    A.I(f'buffer_store_short v15, v14, {srd(WS)}, s35 offen')
    A.I('s_cmp_ge_u32 s2, 16')
    A.I('s_cbranch_scc1 k0_kernel_end')
    A.I('v_and_b32 v13, 511, v13')
    A.I('v_lshrrev_b32 v16, 6, v13')
    A.I('v_lshlrev_b32 v16, 6, v16')
    A.I('v_bfe_u32 v17, v13, 4, 1')
    A.I('v_lshl_add_u32 v16, v17, 3, v16')
    A.I('v_and_b32 v17, 7, v13')
    A.I('v_add_u32 v16, v16, v17')
    A.I('v_bfe_u32 v17, v13, 3, 1')
    A.I('v_lshl_add_u32 v16, v17, 5, v16')
    A.I('v_lshlrev_b32 v16, 2, v16')
    A.I('v_bfe_u32 v17, v13, 5, 1')
    A.I('v_add_u32 v16, v16, v17')
    A.I('v_lshlrev_b32 v16, 2, v16')
    A.I(f's_mov_b32 s35, {GS}')
    A.I('s_cmp_lt_u32 s2, 8')
    A.I('s_cbranch_scc1 k0_mod_gs_s')
    A.I('v_and_b32 v17, 1, v13')
    A.I('v_cmp_ne_u32 vcc, 0, v17')
    A.I('v_cndmask_b32 v12, v15, v12, vcc')
    A.I(f'buffer_store_dword v12, v16, {srd(WS)}, s35 offen')
    A.I(f'buffer_store_dword v12, v16, {srd(WS)}, s35 offen offset:256')
    A.I('s_branch k0_kernel_end')
    A.label('k0_mod_gs_s')
    A.I(f'buffer_store_dword v12, v16, {srd(WS)}, s35 offen offset:8')
    A.I(f'buffer_store_dword v12, v16, {srd(WS)}, s35 offen offset:264')
    A.I('s_branch k0_kernel_end')

    A.label('k0_misc')
    A.vm = []; A.lg = []
    make_srd(A, 24, P['wphi'], NBYTES['wphi'])
    A.I('s_sub_u32 s32, s2, 48')
    for r in range(4, 8):
        A.I(f'v_mov_b32 v{r}, 0')
    A.I('v_lshlrev_b32 v2, 4, v0')
    A.I('s_lshl_b32 s33, s32, 13')
    A.I(f's_add_u32 s33, s33, {ZERO}')
    A.I(f'buffer_store_dwordx4 v[4:7], v2, {srd(WS)}, s33 offen')
    A.I('s_add_u32 s33, s33, 4096')
    A.I(f'buffer_store_dwordx4 v[4:7], v2, {srd(WS)}, s33 offen')
    A.I(f's_cmp_ge_u32 s{SW}, 2')
    A.I('s_cbranch_scc1 k0_kernel_end')
    A.I('s_lshl_b32 s34, s32, 1')
    A.I(f's_add_u32 s34, s34, s{SW}')
    A.I('v_and_b32 v8, 31, v1')
    A.I('v_lshrrev_b32 v9, 5, v1')
    A.I('v_lshrrev_b32 v10, 3, v8')
    A.I('v_and_b32 v11, 3, v8')
    A.I('v_lshl_add_u32 v10, v10, 2, v11')
    A.I('v_lshlrev_b32 v12, 6, v9')
    A.I('v_add_lshl_u32 v12, v12, v10, 1')
    A.I('s_lshl_b32 s35, s34, 9')
    dl = [0, 1, 2, 3, 8, 9, 10, 11]
    for j in range(8):
        A.I(f'buffer_load_ushort {v(16+j)}, v12, {srd(24)}, s35 offen offset:{dl[j]*32}')
    A.I('v_bfe_u32 v13, v8, 2, 1')
    A.I('v_mul_u32_u24 v13, 0x8000, v13')
    A.I('v_lshl_or_b32 v13, v13, 16, v13')
    A.wait_vm()
    for d in range(4):
        A.I(f'v_lshl_or_b32 {v(24+d)}, {v(16+2*d+1)}, 16, {v(16+2*d)}')
        A.I(f'v_xor_b32 {v(24+d)}, {v(24+d)}, v13')
    A.I('v_lshlrev_b32 v14, 4, v1')
    A.I('s_lshl_b32 s35, s34, 10')
    A.I(f's_add_u32 s35, s35, {PHIW}')
    A.I(f'buffer_store_dwordx4 v[24:27], v14, {srd(WS)}, s35 offen')
    A.I('s_branch k0_kernel_end')

    A.label('k0_xh')
    A.vm = []; A.lg = []
    make_srd(A, 24, P['x'], NBYTES['x'])
    A.I('s_sub_u32 s32, s2, 64')
    A.I('s_and_b32 s33, s32, 7')
    A.I('s_lshl_b32 s33, s33, 8')
    A.I('s_lshr_b32 s34, s32, 3')
    A.I('s_lshl_b32 s34, s34, 4')
    A.I('s_add_u32 s33, s33, s34')
    A.I(f's_lshl_b32 s34, s{SW}, 2')
    A.I('s_add_u32 s33, s33, s34')
    A.I('s_lshl_b32 s34, s33, 10')
    A.I('v_lshlrev_b32 v2, 4, v1')
    for r in range(4):
        A.I(f'buffer_load_dwordx4 {v(8+4*r,4)}, v2, {srd(24)}, s34 offen offset:{1024*r}', tag=f'x{r}')
    A.I('v_lshrrev_b32 v3, 1, v1')
    A.I('v_lshlrev_b32 v3, 10, v3')
    A.I('v_and_b32 v4, 1, v1')
    A.I('v_lshl_add_u32 v3, v4, 9, v3')
    A.I('s_lshr_b32 s35, s33, 5')
    A.I('s_lshl_b32 s35, s35, 15')
    A.I('s_and_b32 s36, s33, 31')
    A.I('s_lshl_b32 s36, s36, 4')
    A.I('s_add_u32 s35, s35, s36')
    if XH: A.I(f's_add_u32 s35, s35, {XH}')
    F = 32
    SUM = 24
    for r in range(4):
        A.wait_vm(f'x{r}')
        for d in range(4):
            A.I(f'v_lshlrev_b32 {v(F+8*r+2*d)}, 16, {v(8+4*r+d)}')
            A.I(f'v_and_b32 {v(F+8*r+2*d+1)}, 0xffff0000, {v(8+4*r+d)}')
    def wave_sum(regs):
        for sh in (8, 4, 2, 1):
            for g in regs:
                A.I(f'v_add_f32_dpp {v(g)}, {v(g)}, {v(g)} row_ror:{sh} row_mask:0xf bank_mask:0xf')
        for g in regs:
            A.I(f'v_add_f32_dpp {v(g)}, {v(g)}, {v(g)} row_bcast:15 row_mask:0xa bank_mask:0xf')
        for g in regs:
            A.I(f'v_add_f32_dpp {v(g)}, {v(g)}, {v(g)} row_bcast:31 row_mask:0xc bank_mask:0xf')
    for r in range(4):
        A.I(f'v_add_f32 {v(SUM+r)}, {v(F+8*r)}, {v(F+8*r+1)}')
    for e in range(2, 8):
        for r in range(4):
            A.I(f'v_add_f32 {v(SUM+r)}, {v(SUM+r)}, {v(F+8*r+e)}')
    wave_sum([SUM+r for r in range(4)])
    for r in range(4):
        A.I(f'v_readlane_b32 s{40+r}, {v(SUM+r)}, 63')
    A.I(f's_mov_b32 s48, 0xbb000000')
    for r in range(4):
        A.I(f'v_mov_b32 {v(SUM+r)}, s{40+r}')
    for r in range(4):
        A.I(f'v_mul_f32 {v(SUM+r)}, s48, {v(SUM+r)}')
    for r in range(4):
        for e in range(8):
            A.I(f'v_add_f32 {v(F+8*r+e)}, {v(F+8*r+e)}, {v(SUM+r)}')
    for r in range(4):
        A.I(f'v_mul_f32 {v(SUM+r)}, {v(F+8*r)}, {v(F+8*r)}')
    for e in range(1, 8):
        for r in range(4):
            A.I(f'v_fmac_f32 {v(SUM+r)}, {v(F+8*r+e)}, {v(F+8*r+e)}')
    wave_sum([SUM+r for r in range(4)])
    for r in range(4):
        A.I(f'v_readlane_b32 s{40+r}, {v(SUM+r)}, 63')
    A.I('s_mov_b32 s48, 0x3b000000')
    A.I('v_mov_b32 v5, 0x3727c5ac')
    for r in range(4):
        A.I(f'v_mov_b32 {v(SUM+r)}, s{40+r}')
    for r in range(4):
        A.I(f'v_fma_f32 {v(SUM+r)}, {v(SUM+r)}, s48, v5')
    for r in range(4):
        A.I(f'v_rsq_f32 {v(SUM+r)}, {v(SUM+r)}')
    for r in range(4):
        for e in range(8):
            A.I(f'v_mul_f32 {v(F+8*r+e)}, {v(F+8*r+e)}, {v(SUM+r)}')
    for r in range(4):
        for d in range(4):
            A.I(f'v_cvt_pk_bf16_f32 {v(8+4*r+d)}, {v(F+8*r+2*d)}, {v(F+8*r+2*d+1)}')
        A.I(f'buffer_store_dwordx4 {v(8+4*r,4)}, v3, {srd(WS)}, s35 offen offset:{16*r}')
    A.I('s_branch k0_kernel_end')

    A.label('k0_wf1')
    A.vm = []; A.lg = []
    make_srd(A, 24, P['wqkv'], NBYTES['wqkv'])
    A.I('s_sub_u32 s32, s2, 192')
    A.I('s_lshr_b32 s33, s32, 1')
    A.I('s_and_b32 s34, s32, 1')
    A.I('v_lshrrev_b32 v2, 3, v1')
    A.I('v_and_b32 v3, 7, v1')
    A.I('v_bfe_u32 v4, v2, 1, 1')
    A.I('v_lshlrev_b32 v4, 2, v4')
    A.I('v_xor_b32 v3, v3, v4')
    A.I('v_mul_u32_u24 v2, 3072, v2')
    A.I('v_lshl_add_u32 v2, v3, 4, v2')
    A.I(f's_mul_i32 s35, s33, {16*3072}')
    A.I('s_mul_i32 s36, s34, 1536')
    A.I('s_add_u32 s35, s35, s36')
    A.I(f's_mul_i32 s36, s{SW}, 384')
    A.I('s_add_u32 s35, s35, s36')
    A.I(f's_mul_i32 s37, s{SW}, 6144')
    for pp in range(3):
        for hh in range(2):
            A.I(f's_add_u32 s38, s35, {pp*128 + hh*8*3072}')
            A.I(f's_add_u32 m0, s37, {pp*2048 + hh*1024}')
            A.I(f'buffer_load_dwordx4 v2, {srd(24)}, s38 offen lds', tag=f'p{pp}')
    tr_addr(A, 4, 1, 5, 6)
    A.I('v_add_u32 v4, s37, v4')
    A.I('v_xor_b32 v5, 64, v4')
    A.I('v_lshlrev_b32 v10, 4, v1')
    for pp in range(3):
        A.wait_vm(f'p{pp}')
        for nb in range(2):
            r = 16 + 4 * (2*pp + nb)
            A.I(f'ds_read_b64_tr_b16 {v(r,2)}, {v(4+nb)} offset:{pp*2048}', tag=f'f{pp}{nb}')
            A.I(f'ds_read_b64_tr_b16 {v(r+2,2)}, {v(4+nb)} offset:{pp*2048+512}', tag=f'f{pp}{nb}')
    for pp in range(3):
        for nb in range(2):
            r = 16 + 4 * (2*pp + nb)
            A.I('s_mul_i32 s38, s34, 24')
            A.I(f's_mul_i32 s39, s{SW}, 6')
            A.I('s_add_u32 s38, s38, s39')
            A.I(f's_add_u32 s38, s38, {2*pp+nb}')
            A.I('s_lshr_b32 s39, s38, 4')
            A.I('s_and_b32 s38, s38, 15')
            A.I('s_lshl_b32 s38, s38, 5')
            A.I('s_add_u32 s38, s38, s33')
            A.I('s_mul_i32 s38, s38, 3')
            A.I('s_add_u32 s38, s38, s39')
            A.I('s_lshl_b32 s38, s38, 10')
            A.I(f's_add_u32 s38, s38, {WF1}')
            A.wait_lg(f'f{pp}{nb}')
            A.I(f'buffer_store_dwordx4 {v(r,4)}, v10, {srd(WS)}, s38 offen')
    K.end()
    return K

def tr_addr(A, dst, lane, t0, t1):
    A.I(f'v_bfe_u32 {v(t0)}, {v(lane)}, 2, 2')
    A.I(f'v_lshrrev_b32 {v(t1)}, 5, {v(lane)}')
    A.I(f'v_lshl_add_u32 {v(dst)}, {v(t1)}, 3, {v(t0)}')
    A.I(f'v_lshlrev_b32 {v(dst)}, 7, {v(dst)}')
    A.I(f'v_lshrrev_b32 {v(t0)}, 1, {v(t0)}')
    A.I(f'v_lshlrev_b32 {v(t0)}, 2, {v(t0)}')
    A.I(f'v_bfe_u32 {v(t1)}, {v(lane)}, 4, 1')
    A.I(f'v_lshlrev_b32 {v(t1)}, 1, {v(t1)}')
    A.I(f'v_xor_b32 {v(t0)}, {v(t0)}, {v(t1)}')
    A.I(f'v_bfe_u32 {v(t1)}, {v(lane)}, 1, 1')
    A.I(f'v_xor_b32 {v(t0)}, {v(t0)}, {v(t1)}')
    A.I(f'v_lshl_add_u32 {v(dst)}, {v(t0)}, 4, {v(dst)}')
    A.I(f'v_and_b32 {v(t1)}, 1, {v(lane)}')
    A.I(f'v_lshl_add_u32 {v(dst)}, {v(t1)}, 3, {v(dst)}')
```

```python
from common import *

def softmax16(A, L, out, t0, slog):
    m0, m1, sm, sm2 = t0, t0+1, t0+2, t0+3
    A.I(f'v_max3_f32 {v(m0)}, {v(L)}, {v(L+1)}, {v(L+2)}')
    A.I(f'v_max3_f32 {v(m1)}, {v(L+8)}, {v(L+9)}, {v(L+10)}')
    A.I(f'v_max3_f32 {v(m0)}, {v(m0)}, {v(L+3)}, {v(L+4)}')
    A.I(f'v_max3_f32 {v(m1)}, {v(m1)}, {v(L+11)}, {v(L+12)}')
    A.I(f'v_max3_f32 {v(m0)}, {v(m0)}, {v(L+5)}, {v(L+6)}')
    A.I(f'v_max3_f32 {v(m1)}, {v(m1)}, {v(L+13)}, {v(L+14)}')
    A.I(f'v_max3_f32 {v(m0)}, {v(m0)}, {v(L+7)}, {v(L+15)}')
    A.I(f'v_max_f32 {v(m0)}, {v(m0)}, {v(m1)}')
    A.I(f'v_mul_f32 {v(m0)}, s{slog}, {v(m0)}')
    for r in range(16):
        A.I(f'v_fma_f32 {v(L+r)}, {v(L+r)}, s{slog}, -{v(m0)}')
    for r in range(16):
        A.I(f'v_exp_f32 {v(L+r)}, {v(L+r)}')
    A.I(f'v_add_f32 {v(sm)}, {v(L)}, {v(L+1)}')
    A.I(f'v_add_f32 {v(sm2)}, {v(L+2)}, {v(L+3)}')
    for r in range(4, 16, 2):
        A.I(f'v_add_f32 {v(sm)}, {v(sm)}, {v(L+r)}')
        A.I(f'v_add_f32 {v(sm2)}, {v(sm2)}, {v(L+r+1)}')
    A.I(f'v_add_f32 {v(sm)}, {v(sm)}, {v(sm2)}')
    A.I(f'v_rcp_f32 {v(sm)}, {v(sm)}')
    for r in range(16):
        A.I(f'v_mul_f32 {v(L+r)}, {v(L+r)}, {v(sm)}')
    for d in range(8):
        A.I(f'v_cvt_pk_bf16_f32 {v(out+d)}, {v(L+2*d)}, {v(L+2*d+1)}')

def gen_k1():
    K = Kern('k1_kernel', 256, lds=98304, vgprs=256)
    A = K.A
    K.begin()
    P = load_ptrs(A, ['ws'], 4)
    SW = 16; WS = 20
    wave_id(A, SW, 1)
    A.I('v_and_b32 v1, 63, v0')
    A.I('v_lshlrev_b32 v2, 4, v1')
    A.I('s_and_b32 s24, s2, 7')
    A.I('s_lshr_b32 s25, s2, 3')
    A.I('s_lshr_b32 s26, s25, 4')
    A.I('s_lshl_b32 s24, s24, 1')
    A.I('s_add_u32 s24, s24, s26')
    A.I('s_and_b32 s25, s25, 15')
    A.I('s_lshl_b32 s26, s24, 2')
    A.I(f's_add_u32 s26, s26, s{SW}')
    SMB, SHP = 26, 25
    A.I(f's_lshl_b32 s27, s{SMB}, 15')
    assert XH == 0
    SX = 27
    A.I(f's_mul_i32 s28, s{SHP}, {32*3072}')
    A.I(f's_mul_i32 s29, s{SW}, 3072')
    A.I('s_add_u32 s28, s28, s29')
    A.I(f's_add_u32 s28, s28, {WF1}')
    SWSRC = 28; SWLDS = 29
    A.I(f's_mov_b32 s30, {GS}')
    SGS = 30
    A.I(f's_mov_b32 s31, {LOG2E}')
    SLOG = 31
    A.wait_lg()
    make_srd(A, WS, P['ws'], NBYTES['ws'])

    XR = 16
    GR = 80
    HF = 96
    T = 104
    WR = 112
    ACC = 136
    PW = 184
    SEL = 192
    ONES = 200

    def issue_chunk(c):
        sl = c % 4
        for seg in range(3):
            A.I(f's_add_u32 m0, s{SWLDS}, {c*12288 + seg*1024}')
            A.I(f's_add_u32 s32, s{SWSRC}, {c*12288 + seg*1024}')
            A.I(f'buffer_load_dwordx4 v2, {srd(WS)}, s32 offen lds', tag=f'c{c}')
        for q in range(4):
            off = (4*c + q) * 1024
            if off >= 4096:
                A.I(f's_add_u32 s32, s{SX}, {off}')
                A.I(f'buffer_load_dwordx4 {v(XR+16*sl+4*q,4)}, v2, {srd(WS)}, s32 offen', tag=f'c{c}')
            else:
                A.I(f'buffer_load_dwordx4 {v(XR+16*sl+4*q,4)}, v2, {srd(WS)}, s{SX} offen offset:{off}', tag=f'c{c}')
        A.I(f's_add_u32 s32, s{SGS}, {c*1024}')
        A.I(f'buffer_load_dwordx4 {v(GR+4*sl,4)}, v2, {srd(WS)}, s32 offen', tag=f'c{c}')

    for c in range(3):
        issue_chunk(c)
    A.I(f's_lshl_b32 s33, s{SHP}, 11')
    A.I(f's_add_u32 s33, s33, {PHIW}')
    A.I(f'buffer_load_dwordx4 {v(PW,4)}, v2, {srd(WS)}, s33 offen', tag='pw')
    A.I(f'buffer_load_dwordx4 {v(PW+4,4)}, v2, {srd(WS)}, s33 offen offset:1024', tag='pw')
    for r in range(48):
        A.I(f'v_mov_b32 {v(ACC+r)}, 0')
    for q in range(4):
        A.I(f'v_mov_b32 {v(ONES+q)}, 0x3f803f80')
    A.I('v_and_b32 v3, 31, v1')
    A.I('v_lshrrev_b32 v4, 5, v1')
    A.I('v_lshlrev_b32 v4, 4, v4')
    A.I('v_sub_u32 v3, v3, v4')
    A.I('v_mov_b32 v5, 0x3f80')
    A.I('v_mov_b32 v6, 0x3f800000')
    for sidx in range(2):
        for q in range(4):
            e0 = 8*sidx + 2*q
            A.I(f'v_cmp_eq_u32 vcc, {e0}, v3')
            A.I(f'v_cndmask_b32 {v(SEL+4*sidx+q)}, 0, v5, vcc')
            A.I(f'v_cmp_eq_u32 vcc, {e0+1}, v3')
            A.I(f'v_cndmask_b32 {v(SEL+4*sidx+q)}, {v(SEL+4*sidx+q)}, v6, vcc')

    def lds_reads(ks):
        b = WR + 12*(ks & 1)
        for seg in range(3):
            off = ks*3072 + seg*1024
            if off < 65536:
                A.I(f'ds_read_b128 {v(b+4*seg,4)}, v2 offset:{off}', tag=f'w{ks}')
            else:
                A.I(f'ds_read_b128 {v(b+4*seg,4)}, v7 offset:{off-65536}', tag=f'w{ks}')
    A.I('v_add_u32 v7, 0x10000, v2')

    def transform_ops(ks):
        c = ks >> 2; sl = c % 4; q = ks & 3
        x = XR + 16*sl + 4*q
        tt = (ks >> 1) & 1
        g = GR + 4*sl + tt; sreg = GR + 4*sl + 2 + tt
        ops = []
        for j in range(8):
            i = (ks & 1)*8 + j
            ops.append(f'v_mov_b32_dpp {v(T+j)}, {v(sreg)} row_newbcast:{i} row_mask:0xf bank_mask:0xf')
        for j in range(8):
            i = (ks & 1)*8 + j
            ops.append(f'v_dot2c_f32_bf16_dpp {v(T+j)}, {v(g)}, {v(x+(j>>1))} row_newbcast:{i} row_mask:0xf bank_mask:0xf')
        h = HF + 4*(ks & 1)
        for d in range(4):
            ops.append(f'v_cvt_pk_bf16_f32 {v(h+d)}, {v(T+2*d)}, {v(T+2*d+1)}')
        return ops

    A.wait_vm('c0')
    A.I('s_barrier')
    lds_reads(0)
    for o in transform_ops(0): A.I(o)
    for ks in range(32):
        c = ks >> 2
        nxt = ks + 1
        if (ks & 3) == 0 and c + 3 < 8:
            issue_chunk(c + 3)
        if nxt < 32 and (nxt & 3) == 0:
            A.wait_vm(f'c{nxt>>2}')
            A.I('s_barrier')
        A.wait_lg(f'w{ks}')
        ops = []
        if nxt < 32:
            lds_reads(nxt)
            ops = transform_ops(nxt)
        h = HF + 4*(ks & 1); b = WR + 12*(ks & 1)
        A.I(f'v_mfma_f32_32x32x16_bf16 {v(ACC,16)}, {v(b,4)}, {v(h,4)}, {v(ACC,16)}')
        for o in ops[:7]: A.I(o)
        A.I(f'v_mfma_f32_32x32x16_bf16 {v(ACC+16,16)}, {v(b+4,4)}, {v(h,4)}, {v(ACC+16,16)}')
        for o in ops[7:14]: A.I(o)
        A.I(f'v_mfma_f32_32x32x16_bf16 {v(ACC+32,16)}, {v(h,4)}, {v(b+8,4)}, {v(ACC+32,16)}')
        for o in ops[14:]: A.I(o)

    QB, KB, VB = 16, 24, 32
    for d in range(8):
        A.I(f'v_cvt_pk_bf16_f32 {v(QB+d)}, {v(ACC+2*d)}, {v(ACC+2*d+1)}')
    for d in range(8):
        A.I(f'v_cvt_pk_bf16_f32 {v(KB+d)}, {v(ACC+16+2*d)}, {v(ACC+16+2*d+1)}')
    for d in range(8):
        A.I(f'v_cvt_pk_bf16_f32 {v(VB+d)}, {v(ACC+32+2*d)}, {v(ACC+32+2*d+1)}')
    A.wait_vm('pw')
    L = 40
    for n, (src, hh) in enumerate([(QB, 0), (QB, 1), (KB, 0), (KB, 1)]):
        A.I(f'v_mfma_f32_32x32x16_bf16 {v(L+16*n,16)}, {v(PW+4*hh,4)}, {v(src+4*hh,4)}, 0')
    PH = 104
    TM = 208
    A.I(f's_lshl_b32 s33, s{SMB}, 16')
    A.I(f's_lshl_b32 s34, s{SHP}, 12')
    A.I('s_add_u32 s33, s33, s34')
    A.I(f's_add_u32 s33, s33, {PQ}')
    for hh in range(2):
        softmax16(A, L+16*hh, PH+8*hh, TM, SLOG)
        A.I(f'buffer_store_dwordx4 {v(PH+8*hh,4)}, v2, {srd(WS)}, s33 offen offset:{2048*hh}')
        A.I(f'buffer_store_dwordx4 {v(PH+8*hh+4,4)}, v2, {srd(WS)}, s33 offen offset:{2048*hh+1024}')
    PT = 136
    PB = 152
    KV = 160
    ZZ = 192 + 20
    for hh in range(2):
        softmax16(A, L+32+16*hh, PH+16+8*hh, TM, SLOG)
        ph = PH+16+8*hh
        A.I(f'v_mfma_f32_32x32x16_bf16 {v(PT,16)}, {v(ph,4)}, {v(SEL,4)}, 0')
        A.I(f'v_mfma_f32_32x32x16_bf16 {v(PT,16)}, {v(ph+4,4)}, {v(SEL+4,4)}, {v(PT,16)}')
        for d in range(8):
            A.I(f'v_cvt_pk_bf16_f32 {v(PB+d)}, {v(PT+2*d)}, {v(PT+2*d+1)}')
        A.I(f'v_mfma_f32_32x32x16_bf16 {v(KV+16*hh,16)}, {v(VB,4)}, {v(PB,4)}, 0')
        A.I(f'v_mfma_f32_32x32x16_bf16 {v(KV+16*hh,16)}, {v(VB+4,4)}, {v(PB+4,4)}, {v(KV+16*hh,16)}')
        A.I(f'v_mfma_f32_32x32x16_bf16 {v(ZZ+16*hh,16)}, {v(ONES,4)}, {v(PB,4)}, 0')
        A.I(f'v_mfma_f32_32x32x16_bf16 {v(ZZ+16*hh,16)}, {v(ONES,4)}, {v(PB+4,4)}, {v(ZZ+16*hh,16)}')
    A.I('s_barrier')
    A.I('v_and_b32 v3, 31, v1')
    A.I('v_bfe_u32 v4, v1, 2, 2')
    A.I('v_mul_u32_u24 v4, 576, v4')
    A.I('v_and_b32 v5, 3, v1')
    A.I('v_lshl_add_u32 v4, v5, 2, v4')
    A.I(f's_mul_i32 s34, s{SW}, 4608')
    A.I('v_add_u32 v4, s34, v4')
    A.I('v_bfe_u32 v5, v1, 4, 1')
    A.I('v_lshl_add_u32 v8, v5, 4, v4')
    A.I('v_lshl_add_u32 v4, v5, 8, v4')
    A.I('v_lshrrev_b32 v5, 5, v1')
    A.I('v_lshl_add_u32 v4, v5, 6, v4')
    for hh in range(2):
        for r in range(8):
            d = 8*(r >> 2) + (r & 3)
            A.I(f'ds_write_b32 v4, {v(KV+16*hh+8*hh+r)} offset:{2304*hh + 16*d}')
        A.I(f'ds_write_b32 v8, {v(ZZ+16*hh)} offset:{2304*hh + 512}')
    A.wait_lg()
    A.I('s_barrier')
    A.I('v_lshrrev_b32 v3, 7, v0')
    A.I('v_mul_u32_u24 v3, 576, v3')
    A.I('v_and_b32 v4, 127, v0')
    A.I('v_lshl_add_u32 v3, v4, 2, v3')
    R = 16
    for i in range(4):
        for w_ in range(4):
            A.I(f'ds_read_b32 {v(R+4*i+w_)}, v3 offset:{w_*4608 + (i>>1)*2304 + (i&1)*1152}', tag=f'r{i}')
    A.I('v_lshrrev_b32 v4, 5, v1')
    A.I('v_mul_u32_u24 v4, 2304, v4')
    A.I('v_bfe_u32 v5, v1, 3, 2')
    A.I('v_mul_u32_u24 v5, 576, v5')
    A.I('v_add_u32 v4, v4, v5')
    A.I('v_and_b32 v5, 7, v1')
    A.I('v_lshl_add_u32 v4, v5, 2, v4')
    A.I('v_add_u32 v4, 512, v4')
    for w_ in range(4):
        A.I(f'ds_read_b32 {v(R+16+w_)}, v4 offset:{w_*4608}', tag='rz')
    A.I(f's_mul_i32 s34, s{SHP}, 4608')
    A.I(f's_add_u32 s34, s34, {KVF}')
    for i in range(4):
        A.wait_lg(f'r{i}')
        A.I(f'v_add_f32 {v(R+4*i)}, {v(R+4*i)}, {v(R+4*i+1)}')
        A.I(f'v_add_f32 {v(R+4*i+2)}, {v(R+4*i+2)}, {v(R+4*i+3)}')
        A.I(f'v_add_f32 {v(R+4*i)}, {v(R+4*i)}, {v(R+4*i+2)}')
        A.I(f'buffer_atomic_add_f32 {v(R+4*i)}, v3, {srd(WS)}, s34 offen offset:{(i>>1)*2304 + (i&1)*1152}')
    A.I(f's_cmp_lg_u32 s{SW}, 0')
    A.I('s_cbranch_scc1 k1_kernel_end')
    A.wait_lg()
    A.I(f'v_add_f32 {v(R+16)}, {v(R+16)}, {v(R+17)}')
    A.I(f'v_add_f32 {v(R+18)}, {v(R+18)}, {v(R+19)}')
    A.I(f'v_add_f32 {v(R+16)}, {v(R+16)}, {v(R+18)}')
    A.I(f'buffer_atomic_add_f32 {v(R+16)}, v4, {srd(WS)}, s34 offen')
    K.end()
    return K
```

```python
from common import *

PART = 65536

def tr_addr_perm(A, dst, t0, t1):
    A.I(f'v_bfe_u32 {v(t0)}, v1, 2, 2')
    A.I(f'v_lshrrev_b32 {v(t1)}, 5, v1')
    A.I(f'v_lshl_add_u32 {v(dst)}, {v(t1)}, 2, {v(t0)}')
    A.I(f'v_lshlrev_b32 {v(dst)}, 7, {v(dst)}')
    A.I(f'v_lshrrev_b32 {v(t0)}, 1, {v(t0)}')
    A.I(f'v_lshlrev_b32 {v(t0)}, 2, {v(t0)}')
    A.I(f'v_bfe_u32 {v(t1)}, v1, 4, 1')
    A.I(f'v_lshlrev_b32 {v(t1)}, 1, {v(t1)}')
    A.I(f'v_xor_b32 {v(t0)}, {v(t0)}, {v(t1)}')
    A.I(f'v_bfe_u32 {v(t1)}, v1, 1, 1')
    A.I(f'v_xor_b32 {v(t0)}, {v(t0)}, {v(t1)}')
    A.I(f'v_lshl_add_u32 {v(dst)}, {v(t0)}, 4, {v(dst)}')
    A.I(f'v_and_b32 {v(t1)}, 1, v1')
    A.I(f'v_lshl_add_u32 {v(dst)}, {v(t1)}, 3, {v(dst)}')

def dma_row_off(A, dst, t0, t1, pitch):
    A.I(f'v_lshrrev_b32 {v(dst)}, 3, v1')
    A.I(f'v_and_b32 {v(t0)}, 7, v1')
    A.I(f'v_bfe_u32 {v(t1)}, {v(dst)}, 1, 1')
    A.I(f'v_lshlrev_b32 {v(t1)}, 2, {v(t1)}')
    A.I(f'v_xor_b32 {v(t0)}, {v(t0)}, {v(t1)}')
    A.I(f'v_mul_u32_u24 {v(dst)}, {pitch}, {v(dst)}')
    A.I(f'v_lshl_add_u32 {v(dst)}, {v(t0)}, 4, {v(dst)}')

def tile64_decode(A, SRT, SNT):
    A.I('s_and_b32 s24, s2, 7')
    A.I('s_lshr_b32 s25, s2, 3')
    A.I('s_lshl_b32 s24, s24, 2')
    A.I('s_lshr_b32 s26, s25, 3')
    A.I(f's_add_u32 s{SRT}, s24, s26')
    A.I(f's_and_b32 s{SNT}, s25, 7')

def write_partials(A, ACC, SW, t0, t1):
    A.I(f'v_and_b32 {v(t0)}, 31, v1')
    A.I(f'v_mul_u32_u24 {v(t0)}, 272, {v(t0)}')
    A.I(f'v_lshrrev_b32 {v(t1)}, 5, v1')
    A.I(f'v_lshl_add_u32 {v(t0)}, {v(t1)}, 4, {v(t0)}')
    A.I(f's_mul_i32 s40, s{SW}, 17408')
    A.I(f's_add_u32 s40, s40, {PART}')
    A.I(f'v_add_u32 {v(t0)}, s40, {v(t0)}')
    for mbl in range(2):
        for nb in range(2):
            for g in range(4):
                r = ACC + 16*(2*mbl+nb) + 4*g
                A.I(f'ds_write_b128 {v(t0)}, {v(r,4)} offset:{mbl*32*272 + nb*128 + g*32}')

def read_partials(A, R, t0, t1):
    A.I(f'v_lshrrev_b32 {v(t0)}, 3, v0')
    A.I(f'v_mul_u32_u24 {v(t0)}, 272, {v(t0)}')
    A.I(f'v_and_b32 {v(t1)}, 7, v0')
    A.I(f'v_lshl_add_u32 {v(t0)}, {v(t1)}, 5, {v(t0)}')
    A.I(f'v_add_u32 {v(t0)}, {PART}, {v(t0)}')
    for w_ in range(4):
        for half in range(2):
            for q in range(2):
                A.I(f'ds_read_b128 {v(R+16*w_+8*half+4*q,4)}, {v(t0)} offset:{w_*17408 + half*32*272 + q*16}', tag=f'p{w_}')
    A.wait_lg('p1')
    for e in range(16):
        A.I(f'v_add_f32 {v(R+e)}, {v(R+e)}, {v(R+16+e)}')
    A.wait_lg('p3')
    for e in range(16):
        A.I(f'v_add_f32 {v(R+32+e)}, {v(R+32+e)}, {v(R+48+e)}')
    for e in range(16):
        A.I(f'v_add_f32 {v(R+e)}, {v(R+e)}, {v(R+32+e)}')

def unpack8(A, dst, src):
    for d in range(4):
        A.I(f'v_lshlrev_b32 {v(dst+2*d)}, 16, {v(src+d)}')
        A.I(f'v_and_b32 {v(dst+2*d+1)}, 0xffff0000, {v(src+d)}')

def gen_k23():
    K = Kern('k23_kernel', 256, lds=PART + 4*17408, vgprs=256, agprs=64)
    A = K.A
    K.begin()
    P = load_ptrs(A, ['x', 'wo', 'ws'], 4)
    SW = 16; WS = 20; WO = 28; XS = 32
    wave_id(A, SW, 1)
    A.I('v_and_b32 v1, 63, v0')
    A.I('v_lshlrev_b32 v2, 4, v1')
    SRT, SNT = 17, 18
    tile64_decode(A, SRT, SNT)
    A.wait_lg()
    make_srd(A, WS, P['ws'], NBYTES['ws'])
    make_srd(A, WO, P['wo'], NBYTES['wo'])
    make_srd(A, XS, P['x'], NBYTES['x'])
    dma_row_off(A, 3, 4, 5, 1024)
    tr_addr_perm(A, 4, 5, 6)
    A.I(f's_lshl_b32 s36, s{SW}, 14')
    A.I('v_add_u32 v4, s36, v4')
    A.I('v_xor_b32 v5, 64, v4')
    A.I('v_and_b32 v7, 31, v1')
    A.I('v_lshrrev_b32 v8, 5, v1')
    A.I('v_lshlrev_b32 v6, 4, v7')
    A.I('v_lshl_add_u32 v6, v8, 8, v6')
    A.I('v_lshlrev_b32 v9, 4, v8')
    A.I('v_add_u32 v9, 512, v9')
    A.I('v_cmp_gt_u32 vcc, 16, v7')
    A.I('v_cndmask_b32 v6, v9, v6, vcc')
    A.I(f's_lshl_b32 s37, s{SW}, 17')
    A.I(f's_lshl_b32 s38, s{SNT}, 7')
    A.I('s_add_u32 s37, s37, s38')
    A.I(f's_mul_i32 s38, s{SW}, {8*2304}')
    A.I(f's_add_u32 s38, s38, {KVF}')
    A.I(f's_lshl_b32 s39, s{SRT}, 17')
    A.I(f's_lshl_b32 s41, s{SW}, 14')
    A.I('s_add_u32 s39, s39, s41')
    A.I(f's_add_u32 s39, s39, {PQ}')
    KR = 16
    KB = 80
    DN = 88
    OF = 120
    WFR = 128
    ACC = 136
    def issue_head(hh):
        sl = hh % 4
        for q in range(4):
            A.I(f's_add_u32 s42, s38, {hh*2304 + q*576}')
            A.I(f'buffer_load_dwordx4 {v(KR+16*sl+4*q,4)}, v6, {srd(WS)}, s42 offen', tag=f'h{hh}')
        for mbl in range(2):
            A.I(f's_add_u32 s42, s39, {mbl*65536 + hh*2048}')
            A.I(f'buffer_load_dwordx4 {a(16*sl+8*mbl,4)}, v2, {srd(WS)}, s42 offen', tag=f'h{hh}')
            A.I(f'buffer_load_dwordx4 {a(16*sl+8*mbl+4,4)}, v2, {srd(WS)}, s42 offen offset:1024', tag=f'h{hh}')
        for half in range(2):
            A.I(f's_add_u32 m0, s36, {hh*2048 + half*1024}')
            A.I(f's_add_u32 s42, s37, {(hh*16 + half*8)*1024}')
            A.I(f'buffer_load_dwordx4 v3, {srd(WO)}, s42 offen lds', tag=f'h{hh}')
    for hh in range(4):
        issue_head(hh)
    for r in range(64):
        A.I(f'v_mov_b32 {v(ACC+r)}, 0')
    A.I('v_mov_b32 v10, 0x358637bd')
    for hh in range(8):
        sl = hh % 4
        A.wait_vm(f'h{hh}')
        for nb in range(2):
            A.I(f'ds_read_b64_tr_b16 {v(WFR+4*nb,2)}, {v(4+nb)} offset:{hh*2048}', tag=f'wf{hh}')
            A.I(f'ds_read_b64_tr_b16 {v(WFR+4*nb+2,2)}, {v(4+nb)} offset:{hh*2048+1024}', tag=f'wf{hh}')
        for d in range(8):
            A.I(f'v_cvt_pk_bf16_f32 {v(KB+d)}, {v(KR+16*sl+2*d)}, {v(KR+16*sl+2*d+1)}')
        for mbl in range(2):
            A.I(f'v_mfma_f32_32x32x16_bf16 {v(DN+16*mbl,16)}, {v(KB,4)}, {a(16*sl+8*mbl,4)}, 0')
        for mbl in range(2):
            A.I(f'v_mfma_f32_32x32x16_bf16 {v(DN+16*mbl,16)}, {v(KB+4,4)}, {a(16*sl+8*mbl+4,4)}, {v(DN+16*mbl,16)}')
        if hh + 4 < 8:
            issue_head(hh + 4)
        for mbl in range(2):
            d0 = DN + 16*mbl
            A.I(f'v_add_f32 {v(d0+8)}, {v(d0+8)}, v10')
            A.I(f'v_rcp_f32 {v(d0+8)}, {v(d0+8)}')
            for r in range(8):
                A.I(f'v_mul_f32 {v(d0+r)}, {v(d0+r)}, {v(d0+8)}')
            for d in range(4):
                A.I(f'v_cvt_pk_bf16_f32 {v(OF+4*mbl+d)}, {v(d0+2*d)}, {v(d0+2*d+1)}')
        A.wait_lg(f'wf{hh}')
        for mbl in range(2):
            for nb in range(2):
                acc = ACC + 16*(2*mbl+nb)
                A.I(f'v_mfma_f32_32x32x16_bf16 {v(acc,16)}, {v(WFR+4*nb,4)}, {v(OF+4*mbl,4)}, {v(acc,16)}')
    XR, GA, G2 = 16, 24, 32
    A.I('v_lshrrev_b32 v6, 3, v0')
    A.I('v_and_b32 v7, 7, v0')
    A.I('v_lshlrev_b32 v8, 10, v6')
    A.I('v_lshl_add_u32 v8, v7, 4, v8')
    A.I(f's_lshl_b32 s42, s{SRT}, 16')
    A.I(f's_lshl_b32 s43, s{SNT}, 7')
    A.I('s_add_u32 s42, s42, s43')
    A.I('s_add_u32 s43, s42, 32768')
    A.I(f'buffer_load_dwordx4 {v(XR,4)}, v8, {srd(XS)}, s42 offen', tag='ex')
    A.I(f'buffer_load_dwordx4 {v(XR+4,4)}, v8, {srd(XS)}, s43 offen', tag='ex')
    A.I('v_lshlrev_b32 v9, 5, v7')
    A.I(f's_lshl_b32 s44, s{SNT}, 8')
    A.I(f's_add_u32 s45, s44, {MODV + 1024*4}')
    A.I(f's_add_u32 s44, s44, {MODV + 2048*4}')
    for q in range(2):
        A.I(f'buffer_load_dwordx4 {v(GA+4*q,4)}, v9, {srd(WS)}, s45 offen offset:{16*q}', tag='ex')
        A.I(f'buffer_load_dwordx4 {v(G2+4*q,4)}, v9, {srd(WS)}, s44 offen offset:{16*q}', tag='ex')
    write_partials(A, ACC, SW, 11, 12)
    A.wait_lg()
    A.I('s_barrier')
    R = 136
    read_partials(A, R, 11, 12)
    A.wait_vm('ex')
    XF = 48
    PK = 56
    ST = 60
    A.I('v_lshrrev_b32 v11, 1, v7')
    A.I('v_lshlrev_b32 v11, 10, v11')
    A.I('v_and_b32 v12, 1, v7')
    A.I('v_lshl_add_u32 v11, v12, 9, v11')
    A.I('v_lshl_add_u32 v11, v6, 4, v11')
    A.I(f's_lshl_b32 s46, s{SRT}, 16')
    A.I(f's_lshl_b32 s47, s{SNT}, 12')
    A.I('s_add_u32 s46, s46, s47')
    A.I(f's_add_u32 s46, s46, {A2}')
    A.I('v_lshlrev_b32 v12, 6, v6')
    A.I(f's_lshl_b32 s47, s{SRT}, 12')
    A.I(f's_lshl_b32 s48, s{SNT}, 3')
    A.I('s_add_u32 s47, s47, s48')
    A.I(f's_add_u32 s47, s47, {STATS}')
    A.I(f's_add_u32 s42, s42, {X1}')
    A.I(f's_add_u32 s43, s43, {X1}')
    A.I('v_cmp_eq_u32 s[50:51], 0, v7')
    for half in range(2):
        unpack8(A, XF, XR+4*half)
        for e in range(8):
            A.I(f'v_fmac_f32 {v(XF+e)}, {v(GA+e)}, {v(R+8*half+e)}')
        for d in range(4):
            A.I(f'v_cvt_pk_bf16_f32 {v(PK+d)}, {v(XF+2*d)}, {v(XF+2*d+1)}')
        A.I(f'buffer_store_dwordx4 {v(PK,4)}, v8, {srd(WS)}, s{42+half} offen')
        A.I(f'v_add_f32 {v(ST)}, {v(XF)}, {v(XF+1)}')
        A.I(f'v_mul_f32 {v(ST+1)}, {v(XF)}, {v(XF)}')
        for e in range(2, 8):
            A.I(f'v_add_f32 {v(ST)}, {v(ST)}, {v(XF+e)}')
        for e in range(1, 8):
            A.I(f'v_fmac_f32 {v(ST+1)}, {v(XF+e)}, {v(XF+e)}')
        for e in range(8):
            A.I(f'v_mul_f32 {v(XF+e)}, {v(XF+e)}, {v(G2+e)}')
        for d in range(4):
            A.I(f'v_cvt_pk_bf16_f32 {v(PK+4+4*0+d+8)}, {v(XF+2*d)}, {v(XF+2*d+1)}')
        if half == 1: A.I('s_add_u32 s46, s46, 32768')
        A.I(f'buffer_store_dwordx4 {v(PK+12,4)}, v11, {srd(WS)}, s46 offen')
        for mode in ('quad_perm:[1,0,3,2]', 'quad_perm:[2,3,0,1]', 'row_half_mirror'):
            for q in range(2):
                A.I(f'v_add_f32_dpp {v(ST+q)}, {v(ST+q)}, {v(ST+q)} {mode} row_mask:0xf bank_mask:0xf')
        A.I('s_mov_b64 s[52:53], exec')
        A.I('s_mov_b64 exec, s[50:51]')
        A.I(f'buffer_store_dwordx2 {v(ST,2)}, v12, {srd(WS)}, s47 offen offset:{2048*half}')
        A.I('s_mov_b64 exec, s[52:53]')
    K.end()
    return K
```

```python
from common import *

def gen_k4():
    RING = 28672
    UTL = 4*RING
    K = Kern('k4_kernel', 256, lds=UTL + 2048, vgprs=256, agprs=128)
    A = K.A
    K.begin()
    P = load_ptrs(A, ['ws'], 4)
    SW = 16; WS = 20
    wave_id(A, SW, 1)
    A.I('v_and_b32 v1, 63, v0')
    A.I('v_lshlrev_b32 v2, 4, v1')
    A.I('s_and_b32 s24, s2, 7')
    A.I('s_lshr_b32 s25, s2, 3')
    A.I('s_lshr_b32 s26, s25, 4')
    A.I('s_lshl_b32 s24, s24, 1')
    A.I('s_add_u32 s24, s24, s26')
    A.I('s_and_b32 s25, s25, 15')
    A.I('s_lshl_b32 s26, s24, 2')
    A.I(f's_add_u32 s26, s26, s{SW}')
    SMB, SFT = 26, 25
    A.I(f's_lshl_b32 s27, s{SMB}, 15')
    A.I(f's_add_u32 s27, s27, {A2}')
    A.I(f's_mul_i32 s28, s{SFT}, {32*7168}')
    A.I(f's_mul_i32 s29, s{SW}, 7168')
    A.I('s_add_u32 s28, s28, s29')
    A.I(f's_add_u32 s28, s28, {WF4}')
    A.wait_lg()
    make_srd(A, WS, P['ws'], NBYTES['ws'])
    ACC = 16
    WR = 128
    def issue_chunk(c):
        sl = c % 4
        for b in range(7):
            A.I(f's_add_u32 m0, s29, {sl*RING + b*1024}')
            A.I(f's_add_u32 s32, s28, {c*4*7168 + b*1024}')
            A.I(f'buffer_load_dwordx4 v2, {srd(WS)}, s32 offen lds', tag=f'c{c}')
        A.I(f's_add_u32 s32, s27, {c*4096}')
        for q in range(4):
            A.I(f'buffer_load_dwordx4 {a(16*c+4*q,4)}, v2, {srd(WS)}, s32 offen offset:{q*1024}', tag=f'c{c}')
    issue_chunk(0)
    ST = 184
    A.I('v_and_b32 v3, 31, v1')
    A.I('v_lshlrev_b32 v3, 6, v3')
    A.I(f's_lshl_b32 s33, s{SMB}, 11')
    A.I(f's_add_u32 s33, s33, {STATS}')
    for q in range(4):
        A.I(f'buffer_load_dwordx4 {v(ST+4*q,4)}, v3, {srd(WS)}, s33 offen offset:{16*q}', tag='st')
    A.I(f's_mul_i32 s33, s{SFT}, 1792')
    A.I(f's_add_u32 s33, s33, {UT}')
    A.I(f's_cmp_ge_u32 s{SW}, 2')
    A.I('s_cbranch_scc1 k4_no_ut')
    A.I(f's_lshl_b32 s34, s{SW}, 10')
    A.I('s_add_u32 s33, s33, s34')
    A.I(f's_add_u32 m0, s34, {UTL}')
    A.I('s_nop 0')
    A.raw(f'    buffer_load_dwordx4 v2, {srd(WS)}, s33 offen lds')
    A.raw('    s_waitcnt vmcnt(0)')
    A.label('k4_no_ut')
    issue_chunk(1)
    issue_chunk(2)
    for r in range(112):
        A.I(f'v_mov_b32 {v(ACC+r)}, 0')
    A.wait_vm('st')
    RS, NM = 200, 201
    A.I(f'v_add_f32 {v(RS)}, {v(ST)}, {v(ST+2)}')
    A.I(f'v_add_f32 {v(NM)}, {v(ST+1)}, {v(ST+3)}')
    for e in range(2, 8):
        A.I(f'v_add_f32 {v(RS)}, {v(RS)}, {v(ST+2*e)}')
        A.I(f'v_add_f32 {v(NM)}, {v(NM)}, {v(ST+2*e+1)}')
    A.I('s_mov_b32 s34, 0x3b000000')
    A.I(f'v_mul_f32 {v(RS)}, s34, {v(RS)}')
    A.I(f'v_mul_f32 {v(NM)}, s34, {v(NM)}')
    A.I(f'v_fma_f32 {v(NM)}, -{v(RS)}, {v(RS)}, {v(NM)}')
    A.I(f'v_max_f32 {v(NM)}, 0, {v(NM)}')
    A.I(f'v_add_f32 {v(NM)}, 0x3727c5ac, {v(NM)}')
    A.I(f'v_rsq_f32 {v(NM)}, {v(NM)}')
    A.I(f'v_mul_f32 {v(202)}, {v(RS)}, {v(NM)}')
    A.I(f'v_mov_b32 {v(RS)}, {v(NM)}')
    A.I(f'v_sub_f32 {v(NM)}, 0, {v(202)}')
    A.I('v_add_u32 v7, 0x10000, v2')

    def lds_reads(ks):
        c = ks >> 2; sl = c % 4
        b0 = WR + 28*(ks & 1)
        for b in range(7):
            off = sl*RING + (ks & 3)*7168 + b*1024
            if off < 65536:
                A.I(f'ds_read_b128 {v(b0+4*b,4)}, v2 offset:{off}', tag=f'w{ks}')
            else:
                A.I(f'ds_read_b128 {v(b0+4*b,4)}, v7 offset:{off-65536}', tag=f'w{ks}')
    A.wait_vm('c0')
    A.I('s_barrier')
    lds_reads(0)
    for ks in range(32):
        c = ks >> 2; nxt = ks + 1
        A.wait_lg(f'w{ks}')
        if nxt < 32 and (nxt & 3) == 0:
            A.wait_vm(f'c{nxt>>2}')
            A.I('s_barrier')
        if nxt < 32:
            lds_reads(nxt)
        b0 = WR + 28*(ks & 1)
        for b in range(7):
            A.I(f'v_mfma_f32_32x32x16_bf16 {v(ACC+16*b,16)}, {v(b0+4*b,4)}, {a(4*ks,4)}, {v(ACC+16*b,16)}')
            if b == 0 and (ks & 3) == 0 and c + 3 < 8:
                issue_chunk(c + 3)
    A.I('v_lshrrev_b32 v3, 5, v1')
    A.I('v_lshlrev_b32 v3, 4, v3')
    A.I(f'v_add_u32 v3, {UTL}, v3')
    A.I(f's_mul_i32 s34, s{SMB}, {112*1024}')
    A.I(f's_mul_i32 s35, s{SFT}, 7168')
    A.I('s_add_u32 s34, s34, s35')
    A.I(f's_add_u32 s34, s34, {HID}')
    UB = WR
    PK = 192
    def ut_reads(b):
        base = UB + 32*(b & 1)
        for g in range(4):
            A.I(f'ds_read_b128 {v(base+4*g,4)}, v3 offset:{b*256 + g*32}', tag=f'u{b}')
            A.I(f'ds_read_b128 {v(base+16+4*g,4)}, v3 offset:{b*256 + 128 + g*32}', tag=f'u{b}')
    ut_reads(0)
    for b in range(7):
        if b + 1 < 7: ut_reads(b + 1)
        A.wait_lg(f'u{b}')
        base = UB + 32*(b & 1); acc = ACC + 16*b
        for r in range(16):
            A.I(f'v_fma_f32 {v(base+r)}, {v(NM)}, {v(base+r)}, {v(base+16+r)}')
        for r in range(16):
            A.I(f'v_fma_f32 {v(acc+r)}, {v(RS)}, {v(acc+r)}, {v(base+r)}')
        for r in range(8):
            A.I(f'v_max_f32 {v(acc+r)}, 0, {v(acc+r)}')
        for r in range(8):
            A.I(f'v_mul_f32 {v(acc+r)}, {v(acc+r)}, {v(acc+8+r)}')
        pk = PK + 4*(b & 1)
        for d in range(4):
            A.I(f'v_cvt_pk_bf16_f32 {v(pk+d)}, {v(acc+2*d)}, {v(acc+2*d+1)}')
        A.I(f'buffer_store_dwordx4 {v(pk,4)}, v2, {srd(WS)}, s34 offen')
        if b < 6: A.I('s_add_u32 s34, s34, 1024')
    K.end()
    return K
```

```python
from common import *
from k23 import PART, tr_addr_perm, dma_row_off, tile64_decode, write_partials, read_partials, unpack8

def gen_k5():
    K = Kern('k5_kernel', 256, lds=PART + 4*17408, vgprs=256, agprs=64)
    A = K.A
    K.begin()
    P = load_ptrs(A, ['wd', 'out', 'ws'], 4)
    SW = 16; WS = 20; WD = 28; OUT = 32
    wave_id(A, SW, 1)
    A.I('v_and_b32 v1, 63, v0')
    A.I('v_lshlrev_b32 v2, 4, v1')
    SRT, SNT = 17, 18
    tile64_decode(A, SRT, SNT)
    A.wait_lg()
    make_srd(A, WS, P['ws'], NBYTES['ws'])
    make_srd(A, WD, P['wd'], NBYTES['wd'])
    make_srd(A, OUT, P['out'], NBYTES['out'])
    dma_row_off(A, 3, 4, 5, 1024)
    tr_addr_perm(A, 4, 5, 6)
    A.I(f's_lshl_b32 s36, s{SW}, 14')
    A.I('v_add_u32 v4, s36, v4')
    A.I('v_xor_b32 v5, 64, v4')
    NS = 28; D = 8
    A.I(f's_mul_i32 s37, s{SW}, {NS*16*1024}')
    A.I(f's_lshl_b32 s38, s{SNT}, 7')
    A.I('s_add_u32 s37, s37, s38')
    A.I(f's_mul_i32 s38, s{SRT}, {2*112*1024}')
    A.I(f's_mul_i32 s39, s{SW}, {NS*1024}')
    A.I('s_add_u32 s38, s38, s39')
    A.I(f's_add_u32 s38, s38, {HID}')
    A.I(f's_add_u32 s39, s38, {112*1024}')
    WFR = 16
    ACC = 48
    def issue(ks):
        sl = ks % D
        for half in range(2):
            A.I(f's_add_u32 m0, s36, {sl*2048 + half*1024}')
            A.I(f's_add_u32 s42, s37, {(ks*16 + half*8)*1024}')
            A.I(f'buffer_load_dwordx4 v3, {srd(WD)}, s42 offen lds', tag=f'k{ks}')
        for mbl in range(2):
            A.I(f's_add_u32 s42, s{38+mbl}, {ks*1024}')
            A.I(f'buffer_load_dwordx4 {a(8*sl+4*mbl,4)}, v2, {srd(WS)}, s42 offen', tag=f'k{ks}')
    def reads(ks):
        sl = ks % D; b = WFR + 8*(ks & 1)
        for nb in range(2):
            A.I(f'ds_read_b64_tr_b16 {v(b+4*nb,2)}, {v(4+nb)} offset:{sl*2048}', tag=f'w{ks}')
            A.I(f'ds_read_b64_tr_b16 {v(b+4*nb+2,2)}, {v(4+nb)} offset:{sl*2048+1024}', tag=f'w{ks}')
    for ks in range(D):
        issue(ks)
    for r in range(64):
        A.I(f'v_mov_b32 {v(ACC+r)}, 0')
    A.wait_vm('k0')
    reads(0)
    for ks in range(NS):
        sl = ks % D; b = WFR + 8*(ks & 1)
        A.wait_lg(f'w{ks}')
        if ks + 1 < NS:
            A.wait_vm(f'k{ks+1}')
            reads(ks + 1)
        for mbl in range(2):
            for nb in range(2):
                acc = ACC + 16*(2*mbl+nb)
                A.I(f'v_mfma_f32_32x32x16_bf16 {v(acc,16)}, {v(b+4*nb,4)}, {a(8*sl+4*mbl,4)}, {v(acc,16)}')
        if ks + D < NS:
            issue(ks + D)
    XR, GB = 16, 24
    A.I('v_lshrrev_b32 v6, 3, v0')
    A.I('v_and_b32 v7, 7, v0')
    A.I('v_lshlrev_b32 v8, 10, v6')
    A.I('v_lshl_add_u32 v8, v7, 4, v8')
    A.I(f's_lshl_b32 s42, s{SRT}, 16')
    A.I(f's_lshl_b32 s43, s{SNT}, 7')
    A.I('s_add_u32 s42, s42, s43')
    A.I('s_add_u32 s43, s42, 32768')
    A.I(f's_add_u32 s44, s42, {X1}')
    A.I(f's_add_u32 s45, s43, {X1}')
    A.I(f'buffer_load_dwordx4 {v(XR,4)}, v8, {srd(WS)}, s44 offen', tag='ex')
    A.I(f'buffer_load_dwordx4 {v(XR+4,4)}, v8, {srd(WS)}, s45 offen', tag='ex')
    A.I('v_lshlrev_b32 v9, 5, v7')
    A.I(f's_lshl_b32 s44, s{SNT}, 8')
    A.I(f's_add_u32 s44, s44, {MODV + 2560*4}')
    for q in range(2):
        A.I(f'buffer_load_dwordx4 {v(GB+4*q,4)}, v9, {srd(WS)}, s44 offen offset:{16*q}', tag='ex')
    write_partials(A, ACC, SW, 11, 12)
    A.wait_lg()
    A.I('s_barrier')
    R = 136
    read_partials(A, R, 11, 12)
    A.wait_vm('ex')
    XF, PK = 48, 56
    for half in range(2):
        unpack8(A, XF, XR+4*half)
        for e in range(8):
            A.I(f'v_fmac_f32 {v(XF+e)}, {v(GB+e)}, {v(R+8*half+e)}')
        for d in range(4):
            A.I(f'v_cvt_pk_bf16_f32 {v(PK+4*half+d)}, {v(XF+2*d)}, {v(XF+2*d+1)}')
        A.I(f'buffer_store_dwordx4 {v(PK+4*half,4)}, v8, {srd(OUT)}, s{42+half} offen')
    K.end()
    return K
```

```python
from common import *

def ks_body(A, P, SW, WS, sid, lds_base, vbase, end_label):
    G, U = 40, 44
    make_srd(A, G, P['wg'], NBYTES['wg'])
    make_srd(A, U, P['wu'], NBYTES['wu'])
    A.I(f's_mul_i32 s48, s{sid}, 2341')
    A.I('s_lshr_b32 s48, s48, 16')
    A.I('s_mul_i32 s49, s48, 28')
    A.I(f's_sub_u32 s49, s{sid}, s49')
    b = vbase
    A.I(f'v_lshrrev_b32 {v(b)}, 3, v1')
    A.I(f'v_and_b32 {v(b+1)}, 7, v1')
    A.I(f'v_bfe_u32 {v(b+2)}, {v(b)}, 1, 1')
    A.I(f'v_lshlrev_b32 {v(b+2)}, 2, {v(b+2)}')
    A.I(f'v_xor_b32 {v(b+1)}, {v(b+1)}, {v(b+2)}')
    A.I(f'v_mul_u32_u24 {v(b)}, 3584, {v(b)}')
    A.I(f'v_lshl_add_u32 {v(b)}, {v(b+1)}, 4, {v(b)}')
    A.I('s_lshl_b32 s50, s48, 2')
    A.I(f's_add_u32 s50, s50, s{SW}')
    A.I(f's_mul_i32 s50, s50, {16*3584}')
    A.I('s_lshl_b32 s51, s49, 7')
    A.I('s_add_u32 s50, s50, s51')
    A.I(f's_lshl_b32 s51, s{SW}, 12')
    if lds_base: A.I(f's_add_u32 s51, s51, {lds_base}')
    for m, R in enumerate((G, U)):
        for hh in range(2):
            A.I(f's_add_u32 m0, s51, {m*2048 + hh*1024}')
            A.I(f's_add_u32 s52, s50, {hh*8*3584}')
            A.I(f'buffer_load_dwordx4 {v(b)}, {srd(R)}, s52 offen lds', tag='ksd')
    A.I(f'v_and_b32 {v(b+1)}, 31, v1')
    A.I(f'v_lshrrev_b32 {v(b+2)}, 5, v1')
    A.I(f'v_lshlrev_b32 {v(b+2)}, 4, {v(b+2)}')
    A.I(f'v_mov_b32 {v(b+3)}, 0x7fff0000')
    A.I(f'v_cmp_eq_u32 vcc, 0, {v(b+1)}')
    A.I(f'v_cndmask_b32 {v(b+3)}, {v(b+3)}, 0, vcc') if False else None
    A.I(f'v_mov_b32 {v(b+4)}, {2048*2}')
    A.I(f'v_cndmask_b32 {v(b+3)}, {v(b+3)}, {v(b+4)}, vcc')
    A.I(f'v_mov_b32 {v(b+4)}, {1536*2}')
    A.I(f'v_cmp_eq_u32 vcc, 1, {v(b+1)}')
    A.I(f'v_cndmask_b32 {v(b+3)}, {v(b+3)}, {v(b+4)}, vcc')
    A.I(f'v_add_u32 {v(b+3)}, {v(b+3)}, {v(b+2)}')
    A.I('s_lshl_b32 s52, s48, 7')
    A.I(f's_add_u32 s52, s52, {MODB}')
    GF = b + 8
    for q in range(4):
        A.I(f'buffer_load_dwordx4 {v(GF+4*q,4)}, {v(b+3)}, {srd(WS)}, s52 offen offset:{32*q}', tag='ksg')
    t0, t1, ad = b+1, b+2, b+4
    A.I(f'v_bfe_u32 {v(t0)}, v1, 2, 2')
    A.I(f'v_lshrrev_b32 {v(t1)}, 5, v1')
    A.I(f'v_lshl_add_u32 {v(ad)}, {v(t1)}, 3, {v(t0)}')
    A.I(f'v_lshlrev_b32 {v(ad)}, 7, {v(ad)}')
    A.I(f'v_lshrrev_b32 {v(t0)}, 1, {v(t0)}')
    A.I(f'v_lshlrev_b32 {v(t0)}, 2, {v(t0)}')
    A.I(f'v_bfe_u32 {v(t1)}, v1, 1, 1')
    A.I(f'v_xor_b32 {v(t0)}, {v(t0)}, {v(t1)}')
    A.I(f's_lshl_b32 s53, s{SW}, 1')
    A.I(f'v_xor_b32 {v(t0)}, s53, {v(t0)}')
    A.I(f'v_lshl_add_u32 {v(ad)}, {v(t0)}, 4, {v(ad)}')
    A.I(f'v_and_b32 {v(t1)}, 1, v1')
    A.I(f'v_lshl_add_u32 {v(ad)}, {v(t1)}, 3, {v(ad)}')
    A.I(f'v_bfe_u32 {v(t1)}, v1, 4, 1')
    A.I(f'v_lshl_add_u32 {v(ad)}, {v(t1)}, 11, {v(ad)}')
    if lds_base: A.I(f'v_add_u32 {v(ad)}, {lds_base}, {v(ad)}')
    A.I('s_lshl_b32 s53, s49, 2')
    A.I(f's_add_u32 s53, s53, s{SW}')
    A.I('s_mul_i32 s54, s53, 9363')
    A.I('s_lshr_b32 s54, s54, 16')
    A.I('s_mul_i32 s55, s54, 7')
    A.I('s_sub_u32 s55, s53, s55')
    A.I('s_lshl_b32 s54, s54, 5')
    A.I('s_lshl_b32 s56, s48, 2')
    A.I('s_add_u32 s54, s54, s56')
    A.I('s_mul_i32 s54, s54, 7')
    A.I('s_add_u32 s54, s54, s55')
    A.I('s_lshl_b32 s54, s54, 10')
    A.I(f's_add_u32 s54, s54, {WF4}')
    A.I(f'v_lshlrev_b32 {v(b+5)}, 4, v1')
    FR = b + 24
    D = b + 40
    A.wait_vm('ksd')
    A.I('s_barrier')
    for q in range(4):
        A.I(f'ds_read_b64_tr_b16 {v(FR+4*q,2)}, {v(ad)} offset:{4096*q}', tag=f'kf{q}')
        A.I(f'ds_read_b64_tr_b16 {v(FR+4*q+2,2)}, {v(ad)} offset:{4096*q+512}', tag=f'kf{q}')
    A.wait_vm('ksg')
    for q in range(4):
        A.wait_lg(f'kf{q}')
        A.I(f'buffer_store_dwordx4 {v(FR+4*q,4)}, {v(b+5)}, {srd(WS)}, s54 offen')
        if q < 3: A.I('s_add_u32 s54, s54, 7168')
        c = '0' if q == 0 else v(D, 16)
        A.I(f'v_mfma_f32_32x32x16_bf16 {v(D,16)}, {v(GF+4*q,4)}, {v(FR+4*q,4)}, {c}')
    A.I(f'v_permlane32_swap_b32 {v(D)}, {v(D+1)}')
    A.I('s_lshl_b32 s53, s53, 8')
    A.I(f's_add_u32 s53, s53, {UT}')
    A.I(f'v_lshlrev_b32 {v(b+5)}, 2, v1')
    A.I(f'buffer_atomic_add_f32 {v(D)}, {v(b+5)}, {srd(WS)}, s53 offen')

def gen_ks():
    K = Kern('ks_kernel', 224, lds=16384, vgprs=96)
    A = K.A
    K.begin()
    P = load_ptrs(A, ['wg', 'wu', 'ws'], 4)
    SW = 16; WS = 20
    wave_id(A, SW, 1)
    A.I('v_and_b32 v1, 63, v0')
    A.wait_lg()
    make_srd(A, WS, P['ws'], NBYTES['ws'])
    ks_body(A, P, SW, WS, 2, 0, 8, 'ks_kernel_end')
    K.end()
    return K
```

```python
import sys
from common import *
import k0, k1, ks, k23, k4, k5

def assemble(kerns, launches, path):
    out = []
    for name, grid, lds in launches:
        out.append(f'; @launch kernel={name} grid=({grid},1,1) block=(256,1,1) lds={lds}')
    out.append('.amdgcn_target "amdgcn-amd-amdhsa--gfx950"')
    out.append('.text')
    for K in kerns:
        out.append(K.A.text())
    out.append('.section .rodata,"a"')
    for K in kerns:
        out.append('.p2align 6')
        out.append(K.descriptor())
    open(path, 'w').write('\n'.join(out))

if __name__ == '__main__':
    kk = [k0.gen_k0(), ks.gen_ks(), k1.gen_k1(), k23.gen_k23(), k4.gen_k4(), k5.gen_k5()]
    assemble(kk, [(K.name, K.grid, K.lds) for K in kk], sys.argv[1])
    print('nops inserted', [K.A.nops_inserted for K in kk])
```

```python
import sys
from common import *
import build, k0, k1, ks, k23, k4, k5
def nop():
    K = Kern('nop_kernel', 1, lds=0, vgprs=8)
    K.begin(); K.end()
    return K
kk = [k0.gen_k0(), ks.gen_ks(), k1.gen_k1(), k23.gen_k23(), k4.gen_k4(), k5.gen_k5()]
n = nop()
base = [(K.name, K.grid, K.lds) for K in kk]
build.assemble(kk + [n], base + [(n.name, 1, 0)]*4, 'exp_plus4.s')
build.assemble(kk + [n], base + [(n.name, 1, 0)]*12, 'exp_plus12.s')
build.assemble(kk, base, 'exp_base.s')
```

```python
from asmlib import *

XH    = 0x000000
WF1   = 0x200000
MODV  = 0x380000
MODB  = 0x384000
GS    = 0x388000
PHIW  = 0x390000
ZERO  = 0x3A0000
KVF   = ZERO
UT    = ZERO + 73728
PQ    = 0x400000
X1    = 0x800000
A2    = 0xA00000
STATS = 0xC00000
WF4   = 0xD00000
HID   = 0x1100000
WS_BYTES = 0x1800000

KA = dict(x=0, wqkv=8, wphi=16, wo=24, bx=32, wg=40, wu=48, wd=56, c=64, wmod=72, out=80, dbg=88, ws=96)
NBYTES = dict(x=2048*512*2, wqkv=512*1536*2, wphi=32*256*2, wo=512*512*2, wg=512*1792*2, wu=512*1792*2,
              wd=1792*512*2, c=1024, wmod=512*3072*2, out=2048*512*2, ws=WS_BYTES, dbg=256)

LOG2E = 0x3fb8aa3b
PROF = 0x1900000
PROFILE = False

def stamp(A, idx):
    if not PROFILE: return
    A.I(f's_memtime s[{64+2*idx}:{65+2*idx}]')
    if idx == 0:
        A.I('s_memrealtime s[76:77]')

def stamp_flush(A, kidx, WS, SW):
    if not PROFILE: return
    A.I('s_memrealtime s[78:79]')
    A.I('s_waitcnt lgkmcnt(0)')
    A.lg = []; A.smem_out = False
    lab = f'prof_skip_{kidx}'
    A.I(f's_cmp_lg_u32 s{SW}, 0')
    A.I(f's_cbranch_scc1 {lab}')
    for i in range(6):
        A.I(f'v_mov_b32 v{240+i}, s{64+2*i}')
    A.I('v_mov_b32 v246, s76')
    A.I('v_mov_b32 v247, s78')
    A.I('s_lshl_b32 s80, s2, 6')
    A.I(f's_add_u32 s80, s80, {PROF + kidx*16384}')
    A.I('v_mov_b32 v248, 0')
    A.I(f's_mov_b32 s{WS+2}, 0x2000000')
    A.I('s_mov_b64 s[82:83], exec')
    A.I('s_mov_b64 exec, 1')
    A.I(f'buffer_store_dwordx4 v[240:243], v248, {s(WS,4)}, s80 offen')
    A.I(f'buffer_store_dwordx4 v[244:247], v248, {s(WS,4)}, s80 offen offset:16')
    A.I('s_mov_b64 exec, s[82:83]')
    A.label(lab)


class Kern:
    def __init__(self, name, grid, lds, vgprs, agprs=0, sgprs=100):
        self.name = name; self.grid = grid; self.lds = lds
        self.vgprs = vgprs; self.agprs = agprs; self.sgprs = sgprs
        self.A = Asm()

    def begin(self):
        A = self.A
        A.raw(f'.globl {self.name}\n.p2align 8\n.type {self.name},@function\n{self.name}:')
        A.I(f's_cmp_ge_u32 s2, {self.grid}')
        A.I(f's_cbranch_scc1 {self.name}_end')

    def end(self):
        A = self.A
        A.label(f'{self.name}_end')
        A.I('s_endpgm')

    def descriptor(self):
        acc = (self.vgprs + 3) // 4 * 4
        if self.agprs:
            nfv = acc + self.agprs
        else:
            nfv = self.vgprs
        return (f'.amdhsa_kernel {self.name}\n'
                f'  .amdhsa_next_free_vgpr {nfv}\n'
                f'  .amdhsa_next_free_sgpr {self.sgprs}\n'
                f'  .amdhsa_accum_offset {acc}\n'
                f'  .amdhsa_group_segment_fixed_size 0\n'
                f'  .amdhsa_kernarg_size 104\n'
                f'  .amdhsa_user_sgpr_count 2\n'
                f'  .amdhsa_user_sgpr_kernarg_segment_ptr 1\n'
                f'  .amdhsa_system_sgpr_workgroup_id_x 1\n'
                f'  .amdhsa_float_denorm_mode_32 3\n'
                f'.end_amdhsa_kernel\n')

def load_ptrs(A, names, first):
    out = {}
    r = first
    for n in names:
        A.I(f's_load_dwordx2 {s(r,2)}, s[0:1], {KA[n]}')
        out[n] = r
        r += 2
    return out

def make_srd(A, dst, ptr, nbytes):
    A.I(f's_mov_b32 s{dst}, s{ptr}')
    A.I(f's_and_b32 s{dst+1}, s{ptr+1}, 0xffff')
    A.I(f's_mov_b32 s{dst+2}, {nbytes}')
    A.I(f's_mov_b32 s{dst+3}, 0x20000')

def srd(r):
    return s(r, 4)

def wave_id(A, sdst, vtmp):
    A.I(f'v_lshrrev_b32 {v(vtmp)}, 6, v0')
    A.I(f'v_readfirstlane_b32 s{sdst}, {v(vtmp)}')

def round_bf16_to_f32(A, dst, src):
    A.I(f'v_cvt_pk_bf16_f32 {v(dst)}, {v(src)}, {v(src)}')
    A.I(f'v_lshlrev_b32 {v(dst)}, 16, {v(dst)}')
```

```python
from common import *

def gen_k0():
    K = Kern('k0_kernel', 256, lds=32768, vgprs=112)
    A = K.A
    K.begin()
    P = load_ptrs(A, ['x', 'wqkv', 'wphi', 'c', 'wmod', 'ws'], 4)
    SW = 16
    wave_id(A, SW, 1)
    A.I('v_and_b32 v1, 63, v0')
    A.wait_lg()
    WS = 20
    make_srd(A, WS, P['ws'], NBYTES['ws'])
    A.I('s_cmp_lt_u32 s2, 48');  A.I('s_cbranch_scc1 k0_mod')
    A.I('s_cmp_lt_u32 s2, 64');  A.I('s_cbranch_scc1 k0_misc')
    A.I('s_cmp_lt_u32 s2, 192'); A.I('s_cbranch_scc1 k0_xh')
    A.I('s_branch k0_wf1')

    A.label('k0_mod')
    make_srd(A, 24, P['c'], NBYTES['c'])
    make_srd(A, 28, P['wmod'], NBYTES['wmod'])
    A.I('v_lshlrev_b32 v2, 2, v0')
    A.I(f'buffer_load_dword v3, v2, {srd(24)}, 0 offen', tag='c')
    A.I('v_lshrrev_b32 v4, 3, v1')
    A.I('v_and_b32 v5, 7, v1')
    A.I('v_mul_u32_u24 v6, 6144, v4')
    A.I('v_lshl_add_u32 v6, v5, 4, v6')
    A.I(f's_mul_i32 s32, s{SW}, {128*6144}')
    A.I('s_lshl_b32 s33, s2, 7')
    A.I('s_add_u32 s32, s32, s33')
    WB = 48
    for i in range(16):
        A.I(f'buffer_load_dwordx4 {v(WB+4*i,4)}, v6, {srd(28)}, s32 offen', tag=f'w{i}')
        if i < 15:
            A.I('s_add_u32 s32, s32, 49152')
    A.I('v_lshrrev_b32 v7, 6, v0')
    A.I('v_lshlrev_b32 v7, 7, v7')
    A.I('v_lshlrev_b32 v8, 1, v0')
    A.I('v_and_b32 v8, 7, v8')
    A.I('v_lshl_add_u32 v7, v8, 4, v7')
    A.I('v_lshrrev_b32 v8, 2, v0')
    A.I('v_and_b32 v8, 15, v8')
    A.I('v_add_lshl_u32 v7, v7, v8, 2')
    A.wait_vm('c')
    A.I('v_lshlrev_b32 v8, 16, v3')
    A.I('v_and_b32 v9, 0xffff0000, v3')
    for r in (8, 9):
        A.I(f'v_mul_f32 v{r+2}, 0xbfb8aa3b, v{r}')
    for r in (8, 9):
        A.I(f'v_exp_f32 v{r+2}, v{r+2}')
    for r in (8, 9):
        A.I(f'v_add_f32 v{r+2}, 1.0, v{r+2}')
    for r in (8, 9):
        A.I(f'v_rcp_f32 v{r+2}, v{r+2}')
    for r in (8, 9):
        A.I(f'v_mul_f32 v{r}, v{r}, v{r+2}')
    A.I('v_cvt_pk_bf16_f32 v10, v8, v9')
    A.I('v_lshlrev_b32 v8, 16, v10')
    A.I('v_and_b32 v9, 0xffff0000, v10')
    A.I('ds_write_b32 v7, v8')
    A.I('ds_write_b32 v7, v9 offset:64')
    A.wait_lg()
    A.I('s_barrier')
    A.I(f's_lshl_b32 s33, s{SW}, 9')
    A.I('v_lshlrev_b32 v7, 6, v4')
    A.I('v_add_u32 v7, s33, v7')
    SV = 16
    for q in range(4):
        A.I(f'ds_read_b128 {v(SV+4*q,4)}, v7 offset:{16*q}')
    ACC = 32
    for d in range(8):
        A.I(f'v_mov_b32 {v(ACC+d)}, 0')
    A.wait_lg()
    for i in range(16):
        A.I(f'v_lshrrev_b32 v8, 16, {v(SV+i)}')
        A.wait_vm(f'w{i}')
        for d in range(4):
            A.I(f'v_dot2c_f32_bf16 {v(ACC+2*d)}, {v(WB+4*i+d)}, v8')
            A.I(f'v_dot2c_f32_bf16 {v(ACC+2*d+1)}, {v(WB+4*i+d)}, {v(SV+i)}')
    for q in range(4):
        A.I(f'v_permlane32_swap_b32 {v(ACC+q)}, {v(ACC+q+4)}')
    for q in range(4):
        A.I(f'v_add_f32 {v(ACC+q)}, {v(ACC+q)}, {v(ACC+q+4)}')
    for q in range(2):
        A.I(f'v_permlane16_swap_b32 {v(ACC+q)}, {v(ACC+q+2)}')
    for q in range(2):
        A.I(f'v_add_f32 {v(ACC+q)}, {v(ACC+q)}, {v(ACC+q+2)}')
    A.I('v_and_b32 v8, 8, v1')
    A.I('v_cmp_ne_u32 vcc, 0, v8')
    A.I(f'v_cndmask_b32 v9, {v(ACC)}, {v(ACC+1)}, vcc')
    A.I(f'v_cndmask_b32 v10, {v(ACC+1)}, {v(ACC)}, vcc')
    A.I('v_add_f32_dpp v9, v10, v9 row_ror:8 row_mask:0xf bank_mask:0xf')
    A.I('v_lshlrev_b32 v10, 3, v5')
    A.I('v_bfe_u32 v11, v1, 3, 1');  A.I('v_add_u32 v10, v10, v11')
    A.I('v_bfe_u32 v11, v1, 4, 1');  A.I('v_lshl_add_u32 v10, v11, 1, v10')
    A.I('v_bfe_u32 v11, v1, 5, 1');  A.I('v_lshl_add_u32 v10, v11, 2, v10')
    A.I(f's_lshl_b32 s33, s{SW}, 8')
    A.I('v_lshlrev_b32 v10, 2, v10')
    A.I('v_add_u32 v10, s33, v10')
    A.I('ds_write_b32 v10, v9 offset:4096')
    A.wait_lg()
    A.I('s_barrier')
    A.I(f's_cmp_lg_u32 s{SW}, 0')
    A.I('s_cbranch_scc1 k0_kernel_end')
    A.I('v_lshlrev_b32 v7, 2, v1')
    for q in range(4):
        A.I(f'ds_read_b32 {v(12+q)}, v7 offset:{4096+256*q}')
    A.wait_lg()
    A.I('v_add_f32 v12, v12, v13')
    A.I('v_add_f32 v14, v14, v15')
    A.I('v_add_f32 v12, v12, v14')
    round_bf16_to_f32(A, 12, 12)
    A.I('s_lshr_b32 s33, s2, 3')
    A.I('s_cmp_eq_u32 s33, 1'); A.I('s_cbranch_scc1 k0_mod_add1')
    A.I('s_cmp_eq_u32 s33, 4'); A.I('s_cbranch_scc1 k0_mod_add1')
    A.I('s_branch k0_mod_st')
    A.label('k0_mod_add1')
    A.I('v_add_f32 v12, 1.0, v12')
    round_bf16_to_f32(A, 12, 12)
    A.label('k0_mod_st')
    A.flush_hazards()
    A.I('s_lshl_b32 s34, s2, 6')
    A.I('v_add_u32 v13, s34, v1')
    A.I('v_lshlrev_b32 v14, 2, v13')
    A.I(f's_mov_b32 s35, {MODV}')
    A.I(f'buffer_store_dword v12, v14, {srd(WS)}, s35 offen')
    A.I('v_lshrrev_b32 v15, 16, v12')
    A.I('v_lshlrev_b32 v14, 1, v13')
    A.I(f's_mov_b32 s35, {MODB}')
    A.I(f'buffer_store_short v15, v14, {srd(WS)}, s35 offen')
    A.I('s_cmp_ge_u32 s2, 16')
    A.I('s_cbranch_scc1 k0_kernel_end')
    A.I('s_cmp_lt_u32 s2, 8')
    A.I('s_cbranch_scc1 k0_kernel_end')
    A.I('v_and_b32 v13, 511, v13')
    A.I('v_lshrrev_b32 v16, 6, v13')
    A.I('v_lshlrev_b32 v16, 6, v16')
    A.I('v_bfe_u32 v17, v13, 3, 1')
    A.I('v_lshl_add_u32 v16, v17, 5, v16')
    A.I('v_lshl_add_u32 v16, v17, 2, v16')
    A.I('v_bfe_u32 v17, v13, 2, 1')
    A.I('v_lshl_add_u32 v16, v17, 3, v16')
    A.I('v_and_b32 v17, 3, v13')
    A.I('v_add_u32 v16, v16, v17')
    A.I('v_lshlrev_b32 v16, 2, v16')
    A.I('v_bfe_u32 v17, v13, 4, 2')
    A.I('v_add_lshl_u32 v16, v16, v17, 2')
    A.I('v_or_b32 v12, v12, v15')
    A.I(f's_mov_b32 s35, {GS}')
    A.I(f'buffer_store_dword v12, v16, {srd(WS)}, s35 offen')
    A.I('s_branch k0_kernel_end')

    A.label('k0_misc')
    A.vm = []; A.lg = []
    make_srd(A, 24, P['wphi'], NBYTES['wphi'])
    A.I('s_sub_u32 s32, s2, 48')
    for r in range(4, 8):
        A.I(f'v_mov_b32 v{r}, 0')
    A.I('v_lshlrev_b32 v2, 4, v0')
    A.I('s_lshl_b32 s33, s32, 13')
    A.I(f's_add_u32 s33, s33, {ZERO}')
    A.I(f'buffer_store_dwordx4 v[4:7], v2, {srd(WS)}, s33 offen')
    A.I('s_add_u32 s33, s33, 4096')
    A.I(f'buffer_store_dwordx4 v[4:7], v2, {srd(WS)}, s33 offen')
    A.I(f's_cmp_ge_u32 s{SW}, 2')
    A.I('s_cbranch_scc1 k0_kernel_end')
    A.I('s_lshl_b32 s34, s32, 1')
    A.I(f's_add_u32 s34, s34, s{SW}')
    A.I('v_and_b32 v8, 31, v1')
    A.I('v_lshrrev_b32 v9, 5, v1')
    A.I('v_lshrrev_b32 v10, 3, v8')
    A.I('v_and_b32 v11, 3, v8')
    A.I('v_lshl_add_u32 v10, v10, 2, v11')
    A.I('v_lshlrev_b32 v12, 6, v9')
    A.I('v_add_lshl_u32 v12, v12, v10, 1')
    A.I('s_lshl_b32 s35, s34, 9')
    dl = [0, 1, 2, 3, 8, 9, 10, 11]
    for j in range(8):
        A.I(f'buffer_load_ushort {v(16+j)}, v12, {srd(24)}, s35 offen offset:{dl[j]*32}')
    A.I('v_bfe_u32 v13, v8, 2, 1')
    A.I('v_mul_u32_u24 v13, 0x8000, v13')
    A.I('v_lshl_or_b32 v13, v13, 16, v13')
    A.wait_vm()
    for d in range(4):
        A.I(f'v_lshl_or_b32 {v(24+d)}, {v(16+2*d+1)}, 16, {v(16+2*d)}')
        A.I(f'v_xor_b32 {v(24+d)}, {v(24+d)}, v13')
    A.I('v_lshlrev_b32 v14, 4, v1')
    A.I('s_lshl_b32 s35, s34, 10')
    A.I(f's_add_u32 s35, s35, {PHIW}')
    A.I(f'buffer_store_dwordx4 v[24:27], v14, {srd(WS)}, s35 offen')
    A.I('s_branch k0_kernel_end')

    A.label('k0_xh')
    A.vm = []; A.lg = []
    make_srd(A, 24, P['x'], NBYTES['x'])
    A.I('s_sub_u32 s32, s2, 64')
    A.I('s_and_b32 s33, s32, 7')
    A.I('s_lshl_b32 s33, s33, 8')
    A.I('s_lshr_b32 s34, s32, 3')
    A.I('s_lshl_b32 s34, s34, 4')
    A.I('s_add_u32 s33, s33, s34')
    A.I(f's_lshl_b32 s34, s{SW}, 2')
    A.I('s_add_u32 s33, s33, s34')
    A.I('s_lshl_b32 s34, s33, 10')
    A.I('v_lshlrev_b32 v2, 4, v1')
    for r in range(4):
        A.I(f'buffer_load_dwordx4 {v(8+4*r,4)}, v2, {srd(24)}, s34 offen offset:{1024*r}', tag=f'x{r}')
    A.I('v_lshrrev_b32 v3, 1, v1')
    A.I('v_lshlrev_b32 v3, 10, v3')
    A.I('v_and_b32 v4, 1, v1')
    A.I('v_lshl_add_u32 v3, v4, 9, v3')
    A.I('s_lshr_b32 s35, s33, 5')
    A.I('s_lshl_b32 s35, s35, 15')
    A.I('s_and_b32 s36, s33, 31')
    A.I('s_lshl_b32 s36, s36, 4')
    A.I('s_add_u32 s35, s35, s36')
    if XH: A.I(f's_add_u32 s35, s35, {XH}')
    F = 32
    SUM = 24
    for r in range(4):
        A.wait_vm(f'x{r}')
        for d in range(4):
            A.I(f'v_lshlrev_b32 {v(F+8*r+2*d)}, 16, {v(8+4*r+d)}')
            A.I(f'v_and_b32 {v(F+8*r+2*d+1)}, 0xffff0000, {v(8+4*r+d)}')
    def wave_sum(regs):
        for sh in (8, 4, 2, 1):
            for g in regs:
                A.I(f'v_add_f32_dpp {v(g)}, {v(g)}, {v(g)} row_ror:{sh} row_mask:0xf bank_mask:0xf')
        for g in regs:
            A.I(f'v_add_f32_dpp {v(g)}, {v(g)}, {v(g)} row_bcast:15 row_mask:0xa bank_mask:0xf')
        for g in regs:
            A.I(f'v_add_f32_dpp {v(g)}, {v(g)}, {v(g)} row_bcast:31 row_mask:0xc bank_mask:0xf')
    for r in range(4):
        A.I(f'v_add_f32 {v(SUM+r)}, {v(F+8*r)}, {v(F+8*r+1)}')
    for e in range(2, 8):
        for r in range(4):
            A.I(f'v_add_f32 {v(SUM+r)}, {v(SUM+r)}, {v(F+8*r+e)}')
    wave_sum([SUM+r for r in range(4)])
    for r in range(4):
        A.I(f'v_readlane_b32 s{40+r}, {v(SUM+r)}, 63')
    A.I(f's_mov_b32 s48, 0xbb000000')
    for r in range(4):
        A.I(f'v_mov_b32 {v(SUM+r)}, s{40+r}')
    for r in range(4):
        A.I(f'v_mul_f32 {v(SUM+r)}, s48, {v(SUM+r)}')
    for r in range(4):
        for e in range(8):
            A.I(f'v_add_f32 {v(F+8*r+e)}, {v(F+8*r+e)}, {v(SUM+r)}')
    for r in range(4):
        A.I(f'v_mul_f32 {v(SUM+r)}, {v(F+8*r)}, {v(F+8*r)}')
    for e in range(1, 8):
        for r in range(4):
            A.I(f'v_fmac_f32 {v(SUM+r)}, {v(F+8*r+e)}, {v(F+8*r+e)}')
    wave_sum([SUM+r for r in range(4)])
    for r in range(4):
        A.I(f'v_readlane_b32 s{40+r}, {v(SUM+r)}, 63')
    A.I('s_mov_b32 s48, 0x3b000000')
    A.I('v_mov_b32 v5, 0x3727c5ac')
    for r in range(4):
        A.I(f'v_mov_b32 {v(SUM+r)}, s{40+r}')
    for r in range(4):
        A.I(f'v_fma_f32 {v(SUM+r)}, {v(SUM+r)}, s48, v5')
    for r in range(4):
        A.I(f'v_rsq_f32 {v(SUM+r)}, {v(SUM+r)}')
    for r in range(4):
        for e in range(8):
            A.I(f'v_mul_f32 {v(F+8*r+e)}, {v(F+8*r+e)}, {v(SUM+r)}')
    for r in range(4):
        for d in range(4):
            A.I(f'v_cvt_pk_bf16_f32 {v(8+4*r+d)}, {v(F+8*r+2*d)}, {v(F+8*r+2*d+1)}')
        A.I(f'buffer_store_dwordx4 {v(8+4*r,4)}, v3, {srd(WS)}, s35 offen offset:{16*r}')
    A.I('s_branch k0_kernel_end')

    A.label('k0_wf1')
    A.vm = []; A.lg = []
    make_srd(A, 24, P['wqkv'], NBYTES['wqkv'])
    A.I('s_sub_u32 s32, s2, 192')
    A.I('s_lshr_b32 s33, s32, 1')
    A.I('s_and_b32 s34, s32, 1')
    A.I('v_lshrrev_b32 v2, 3, v1')
    A.I('v_and_b32 v3, 7, v1')
    A.I('v_bfe_u32 v4, v2, 1, 1')
    A.I('v_lshlrev_b32 v4, 2, v4')
    A.I('v_xor_b32 v3, v3, v4')
    A.I('v_mul_u32_u24 v2, 3072, v2')
    A.I('v_lshl_add_u32 v2, v3, 4, v2')
    A.I(f's_mul_i32 s35, s33, {16*3072}')
    A.I('s_mul_i32 s36, s34, 1536')
    A.I('s_add_u32 s35, s35, s36')
    A.I(f's_mul_i32 s36, s{SW}, 384')
    A.I('s_add_u32 s35, s35, s36')
    A.I(f's_mul_i32 s37, s{SW}, 6144')
    for pp in range(3):
        for hh in range(2):
            A.I(f's_add_u32 s38, s35, {pp*128 + hh*8*3072}')
            A.I(f's_add_u32 m0, s37, {pp*2048 + hh*1024}')
            A.I(f'buffer_load_dwordx4 v2, {srd(24)}, s38 offen lds', tag=f'p{pp}')
    tr_addr(A, 4, 1, 5, 6)
    A.I('v_add_u32 v4, s37, v4')
    A.I('v_xor_b32 v5, 64, v4')
    A.I('v_lshlrev_b32 v10, 4, v1')
    for pp in range(3):
        A.wait_vm(f'p{pp}')
        for nb in range(2):
            r = 16 + 4 * (2*pp + nb)
            A.I(f'ds_read_b64_tr_b16 {v(r,2)}, {v(4+nb)} offset:{pp*2048}', tag=f'f{pp}{nb}')
            A.I(f'ds_read_b64_tr_b16 {v(r+2,2)}, {v(4+nb)} offset:{pp*2048+512}', tag=f'f{pp}{nb}')
    for pp in range(3):
        for nb in range(2):
            r = 16 + 4 * (2*pp + nb)
            A.I('s_mul_i32 s38, s34, 24')
            A.I(f's_mul_i32 s39, s{SW}, 6')
            A.I('s_add_u32 s38, s38, s39')
            A.I(f's_add_u32 s38, s38, {2*pp+nb}')
            A.I('s_lshr_b32 s39, s38, 4')
            A.I('s_and_b32 s38, s38, 15')
            A.I('s_lshl_b32 s38, s38, 5')
            A.I('s_add_u32 s38, s38, s33')
            A.I('s_mul_i32 s38, s38, 3')
            A.I('s_add_u32 s38, s38, s39')
            A.I('s_lshl_b32 s38, s38, 10')
            A.I(f's_add_u32 s38, s38, {WF1}')
            A.wait_lg(f'f{pp}{nb}')
            A.I(f'buffer_store_dwordx4 {v(r,4)}, v10, {srd(WS)}, s38 offen')
    K.end()
    return K

def tr_addr(A, dst, lane, t0, t1):
    A.I(f'v_bfe_u32 {v(t0)}, {v(lane)}, 2, 2')
    A.I(f'v_lshrrev_b32 {v(t1)}, 5, {v(lane)}')
    A.I(f'v_lshl_add_u32 {v(dst)}, {v(t1)}, 3, {v(t0)}')
    A.I(f'v_lshlrev_b32 {v(dst)}, 7, {v(dst)}')
    A.I(f'v_lshrrev_b32 {v(t0)}, 1, {v(t0)}')
    A.I(f'v_lshlrev_b32 {v(t0)}, 2, {v(t0)}')
    A.I(f'v_bfe_u32 {v(t1)}, {v(lane)}, 4, 1')
    A.I(f'v_lshlrev_b32 {v(t1)}, 1, {v(t1)}')
    A.I(f'v_xor_b32 {v(t0)}, {v(t0)}, {v(t1)}')
    A.I(f'v_bfe_u32 {v(t1)}, {v(lane)}, 1, 1')
    A.I(f'v_xor_b32 {v(t0)}, {v(t0)}, {v(t1)}')
    A.I(f'v_lshl_add_u32 {v(dst)}, {v(t0)}, 4, {v(dst)}')
    A.I(f'v_and_b32 {v(t1)}, 1, {v(lane)}')
    A.I(f'v_lshl_add_u32 {v(dst)}, {v(t1)}, 3, {v(dst)}')
```

```python
import os
from common import *
import ks as ksmod

def softmax16(A, L, out, t0, slog):
    m0, m1 = t0, t0+1
    A.I(f'v_max3_f32 {v(m0)}, {v(L)}, {v(L+1)}, {v(L+2)}')
    A.I(f'v_max3_f32 {v(m1)}, {v(L+8)}, {v(L+9)}, {v(L+10)}')
    A.I(f'v_max3_f32 {v(m0)}, {v(m0)}, {v(L+3)}, {v(L+4)}')
    A.I(f'v_max3_f32 {v(m1)}, {v(m1)}, {v(L+11)}, {v(L+12)}')
    A.I(f'v_max3_f32 {v(m0)}, {v(m0)}, {v(L+5)}, {v(L+6)}')
    A.I(f'v_max3_f32 {v(m1)}, {v(m1)}, {v(L+13)}, {v(L+14)}')
    A.I(f'v_max3_f32 {v(m0)}, {v(m0)}, {v(L+7)}, {v(L+15)}')
    A.I(f'v_max_f32 {v(m0)}, {v(m0)}, {v(m1)}')
    A.I(f'v_mul_f32 {v(m0)}, s{slog}, {v(m0)}')
    for r in range(0, 16, 2):
        A.I(f'v_pk_fma_f32 {v(L+r,2)}, {v(L+r,2)}, {s(slog,2)}, {v(m0,2)} op_sel_hi:[1,1,0] neg_lo:[0,0,1] neg_hi:[0,0,1]')
    for r in range(16):
        A.I(f'v_exp_f32 {v(L+r)}, {v(L+r)}')
    sm = t0 + 2
    A.I(f'v_pk_add_f32 {v(sm,2)}, {v(L,2)}, {v(L+2,2)}')
    A.I(f'v_pk_add_f32 {v(m0,2)}, {v(L+4,2)}, {v(L+6,2)}')
    A.I(f'v_pk_add_f32 {v(sm,2)}, {v(sm,2)}, {v(L+8,2)}')
    A.I(f'v_pk_add_f32 {v(m0,2)}, {v(m0,2)}, {v(L+10,2)}')
    A.I(f'v_pk_add_f32 {v(sm,2)}, {v(sm,2)}, {v(L+12,2)}')
    A.I(f'v_pk_add_f32 {v(m0,2)}, {v(m0,2)}, {v(L+14,2)}')
    A.I(f'v_pk_add_f32 {v(sm,2)}, {v(sm,2)}, {v(m0,2)}')
    A.I(f'v_add_f32 {v(sm)}, {v(sm)}, {v(sm+1)}')
    A.I(f'v_rcp_f32 {v(sm)}, {v(sm)}')
    for r in range(0, 16, 2):
        A.I(f'v_pk_mul_f32 {v(L+r,2)}, {v(L+r,2)}, {v(sm,2)} op_sel_hi:[1,0]')
    for d in range(8):
        A.I(f'v_cvt_pk_bf16_f32 {v(out+d)}, {v(L+2*d)}, {v(L+2*d+1)}')

def gen_k1(side_jobs=True):
    SLDS = 98304
    KSL = SLDS + 2048
    K = Kern('k1_kernel', 256, lds=KSL + 16384, vgprs=256, agprs=64)
    A = K.A
    K.begin()
    stamp(A, 0)
    P = load_ptrs(A, ['ws', 'wg', 'wu', 'wo', 'wd'], 4)
    SW = 16; WS = 20
    wave_id(A, SW, 1)
    A.I('v_and_b32 v1, 63, v0')
    A.I('v_lshlrev_b32 v2, 4, v1')
    A.I('s_and_b32 s24, s2, 7')
    A.I('s_lshr_b32 s25, s2, 3')
    A.I('s_lshr_b32 s26, s25, 4')
    A.I('s_lshl_b32 s24, s24, 1')
    A.I('s_add_u32 s24, s24, s26')
    A.I('s_and_b32 s25, s25, 15')
    if os.environ.get('EXP_FT'): A.I(f"s_and_b32 s25, s25, {os.environ['EXP_FT']}")
    A.I('s_lshl_b32 s26, s24, 2')
    A.I(f's_add_u32 s26, s26, s{SW}')
    SMB, SHP = 26, 25
    A.I(f's_lshl_b32 s27, s{SMB}, 15')
    assert XH == 0
    SX = 27
    A.I(f's_mul_i32 s28, s{SHP}, {32*3072}')
    A.I(f's_mul_i32 s29, s{SW}, 3072')
    A.I('s_add_u32 s28, s28, s29')
    A.I(f's_add_u32 s28, s28, {WF1}')
    SWSRC = 28; SWLDS = 29
    A.I(f's_mov_b32 s30, {GS}')
    SGS = 30
    A.I(f's_mov_b32 s34, {LOG2E}')
    A.I(f's_mov_b32 s35, {LOG2E}')
    SLOG = 34
    A.wait_lg()
    make_srd(A, WS, P['ws'], NBYTES['ws'])

    GR = 16
    MK = 32
    AD = 36
    DM = 40
    HF = 72
    WR = 80
    ACC = 104
    PW = 152
    SEL = 160
    ONES = 168

    def chunk_ops(c):
        sl = c % 4
        ops = []
        ops.append([f's_add_u32 m0, s{SWLDS}, {c*12288}', f's_add_u32 s32, s{SWSRC}, {c*12288}',
                    f'buffer_load_dwordx4 v2, {srd(WS)}, s32 offen lds'])
        ops.append([f'buffer_load_dwordx4 v2, {srd(WS)}, s32 offen offset:1024 lds'])
        ops.append([f'buffer_load_dwordx4 v2, {srd(WS)}, s32 offen offset:2048 lds'])
        ops.append([f's_add_u32 s33, s{SX}, {c*4096}',
                    f'buffer_load_dwordx4 {a(16*sl,4)}, v2, {srd(WS)}, s33 offen'])
        for q in range(1, 4):
            ops.append([f'buffer_load_dwordx4 {a(16*sl+4*q,4)}, v2, {srd(WS)}, s33 offen offset:{q*1024}'])
        ops.append([f's_add_u32 s33, s{SGS}, {c*1024}',
                    f'buffer_load_dwordx4 {v(GR+4*sl,4)}, v2, {srd(WS)}, s33 offen'])
        return ops
    def emit_op(op, tag, inloop=False):
        if inloop and os.environ.get('EXP_NOVM'): return
        for x in op: A.I(x, tag=tag)

    A.I(f's_and_b32 s33, s{SW}, 1')
    A.I('s_lshl_b32 s33, s33, 10')
    A.I(f's_add_u32 m0, s33, {SLDS}')
    A.I(f's_add_u32 s33, s33, {MODV}')
    A.I(f'buffer_load_dwordx4 v2, {srd(WS)}, s33 offen lds', tag='c0')
    for c in range(2):
        for op in chunk_ops(c): emit_op(op, f'c{c}')
    A.I(f's_lshl_b32 s33, s{SHP}, 11')
    A.I(f's_add_u32 s33, s33, {PHIW}')
    A.I(f'buffer_load_dwordx4 {v(PW,4)}, v2, {srd(WS)}, s33 offen', tag='pw')
    A.I(f'buffer_load_dwordx4 {v(PW+4,4)}, v2, {srd(WS)}, s33 offen offset:1024', tag='pw')
    stamp(A, 1)
    for r in range(48):
        A.I(f'v_mov_b32 {v(ACC+r)}, 0')
    for q in range(4):
        A.I(f'v_mov_b32 {v(ONES+q)}, 0x3f803f80')
    A.I('v_and_b32 v3, 31, v1')
    A.I('v_lshrrev_b32 v4, 5, v1')
    A.I('v_lshlrev_b32 v8, 4, v4')
    A.I('v_sub_u32 v8, v3, v8')
    A.I('v_mov_b32 v5, 0x3f80')
    A.I('v_mov_b32 v6, 0x3f800000')
    for sidx in range(2):
        for q in range(4):
            e0 = 8*sidx + 2*q
            A.I(f'v_cmp_eq_u32 vcc, {e0}, v8')
            A.I(f'v_cndmask_b32 {v(SEL+4*sidx+q)}, 0, v5, vcc')
            A.I(f'v_cmp_eq_u32 vcc, {e0+1}, v8')
            A.I(f'v_cndmask_b32 {v(SEL+4*sidx+q)}, {v(SEL+4*sidx+q)}, v6, vcc')
    A.I('v_lshrrev_b32 v8, 3, v3')
    A.I('v_and_b32 v9, 3, v3')
    A.I('v_lshl_add_u32 v8, v8, 2, v9')
    A.I('v_bfe_u32 v9, v3, 2, 1')
    A.I('v_xor_b32 v9, v9, v4')
    A.I('v_lshrrev_b32 v10, 4, v3')
    A.I('v_or_b32 v9, v9, v10')
    A.I('v_lshl_add_u32 v8, v9, 4, v8')
    A.I('v_mov_b32 v5, 0xffff')
    A.I('v_mov_b32 v6, 0xffff0000')
    for d in range(4):
        A.I(f'v_cmp_eq_u32 vcc, {2*d}, v8')
        A.I(f'v_cndmask_b32 {v(MK+d)}, 0, v5, vcc')
        A.I(f'v_cmp_eq_u32 vcc, {2*d+1}, v8')
        A.I(f'v_cndmask_b32 {v(MK+d)}, {v(MK+d)}, v6, vcc')
    A.I('v_add_u32 v7, 0x10000, v2')
    A.I('v_lshlrev_b32 v9, 5, v4')
    A.I(f'v_add_u32 v9, {SLDS}, v9')

    def w_reads(ks):
        b = WR + 12*(ks & 1)
        for seg in range(3):
            off = ks*3072 + seg*1024
            if off < 65536:
                A.I(f'ds_read_b128 {v(b+4*seg,4)}, v2 offset:{off}', tag=f'w{ks}')
            else:
                A.I(f'ds_read_b128 {v(b+4*seg,4)}, v7 offset:{off-65536}', tag=f'w{ks}')
    def s_reads(ks):
        d = DM + 16*(ks & 1)
        for q in range(2):
            A.I(f'ds_read_b128 {v(d+4*q,4)}, v9 offset:{ks*64 + q*16}', tag=f's{ks}')
    def diag(ks):
        g = GR + 4*((ks >> 2) % 4) + (ks & 3)
        for d in range(4):
            A.I(f'v_and_b32 {v(AD+d)}, {v(g)}, {v(MK+d)}')
    def mod_mfma(ks):
        d = DM + 16*(ks & 1)
        x = 16*((ks >> 2) % 4) + 4*(ks & 3)
        A.I(f'v_mfma_f32_32x32x16_bf16 {v(d,16)}, {v(AD,4)}, {a(x,4)}, {v(d,16)}')
    def cvt_h(ks):
        d = DM + 16*(ks & 1); h = HF + 4*(ks & 1)
        for q in range(4):
            A.I(f'v_cvt_pk_bf16_f32 {v(h+q)}, {v(d+2*q)}, {v(d+2*q+1)}')

    extra = []
    if side_jobs:
        extra = ksmod.ks_issue_ops(A, P, SW, WS, KSL, 176)
    A.wait_vm('c0')
    A.I('s_barrier')
    stamp(A, 2)
    s_reads(0); s_reads(1); w_reads(0)
    diag(0)
    A.wait_lg('s0')
    mod_mfma(0)
    diag(1)
    cvt_h(0)
    pend = []
    for ks in range(32):
        c = ks >> 2; nxt = ks + 1
        if (ks & 3) == 0 and c + 2 < 8:
            pend += [(op, f'c{c+2}') for op in chunk_ops(c + 2)]
        if ks == 24:
            pend += extra
        if nxt < 32 and (nxt & 3) == 0:
            A.wait_vm(f'c{nxt>>2}')
            A.I('s_barrier')
            diag(nxt)
        A.wait_lg()
        h = HF + 4*(ks & 1); b = WR + 12*(ks & 1)
        if nxt < 32:
            w_reads(nxt)
            mod_mfma(nxt)
        if ks + 2 < 32:
            s_reads(ks + 2)
        A.I(f'v_mfma_f32_32x32x16_bf16 {v(ACC,16)}, {v(b,4)}, {v(h,4)}, {v(ACC,16)}')
        if pend: emit_op(*pend.pop(0), inloop=True)
        A.I(f'v_mfma_f32_32x32x16_bf16 {v(ACC+16,16)}, {v(b+4,4)}, {v(h,4)}, {v(ACC+16,16)}')
        if ks + 2 < 32 and ((ks + 2) & 3) != 0:
            diag(ks + 2)
        A.I(f'v_mfma_f32_32x32x16_bf16 {v(ACC+32,16)}, {v(h,4)}, {v(b+8,4)}, {v(ACC+32,16)}')
        if pend: emit_op(*pend.pop(0), inloop=True)
        if nxt < 32:
            cvt_h(nxt)
    assert not pend
    stamp(A, 3)
    QB, KB, VB = 16, 24, 32
    for d in range(8):
        A.I(f'v_cvt_pk_bf16_f32 {v(QB+d)}, {v(ACC+2*d)}, {v(ACC+2*d+1)}')
    for d in range(8):
        A.I(f'v_cvt_pk_bf16_f32 {v(KB+d)}, {v(ACC+16+2*d)}, {v(ACC+16+2*d+1)}')
    for d in range(8):
        A.I(f'v_cvt_pk_bf16_f32 {v(VB+d)}, {v(ACC+32+2*d)}, {v(ACC+32+2*d+1)}')
    A.wait_vm('pw')
    L = 40
    for n, (src, hh) in enumerate([(QB, 0), (QB, 1), (KB, 0), (KB, 1)]):
        A.I(f'v_mfma_f32_32x32x16_bf16 {v(L+16*n,16)}, {v(PW+4*hh,4)}, {v(src+4*hh,4)}, 0')
    PH = 104
    TM = 136
    A.I(f's_lshl_b32 s33, s{SMB}, 16')
    A.I(f's_lshl_b32 s36, s{SHP}, 12')
    A.I('s_add_u32 s33, s33, s36')
    A.I(f's_add_u32 s33, s33, {PQ}')
    PT = 208
    PB = 140
    KV = 224
    KV2 = 240
    ZZ = 40
    for hh in range(2):
        softmax16(A, L+32+16*hh, PH+16+8*hh, TM, SLOG)
        ph = PH+16+8*hh
        A.I(f'v_mfma_f32_32x32x16_bf16 {v(PT,16)}, {v(ph,4)}, {v(SEL,4)}, 0')
        A.I(f'v_mfma_f32_32x32x16_bf16 {v(PT,16)}, {v(ph+4,4)}, {v(SEL+4,4)}, {v(PT,16)}')
        softmax16(A, L+16*hh, PH+8*hh, TM, SLOG)
        A.I(f'buffer_store_dwordx4 {v(PH+8*hh,4)}, v2, {srd(WS)}, s33 offen offset:{2048*hh}')
        A.I(f'buffer_store_dwordx4 {v(PH+8*hh+4,4)}, v2, {srd(WS)}, s33 offen offset:{2048*hh+1024}')
        for d in range(8):
            A.I(f'v_cvt_pk_bf16_f32 {v(PB+d)}, {v(PT+2*d)}, {v(PT+2*d+1)}')
        kv = KV if hh == 0 else KV2
        A.I(f'v_mfma_f32_32x32x16_bf16 {v(kv,16)}, {v(VB,4)}, {v(PB,4)}, 0')
        A.I(f'v_mfma_f32_32x32x16_bf16 {v(kv,16)}, {v(VB+4,4)}, {v(PB+4,4)}, {v(kv,16)}')
        z = L + 16*hh
        A.I(f'v_mfma_f32_32x32x16_bf16 {v(z,16)}, {v(ONES,4)}, {v(PB,4)}, 0')
        A.I(f'v_mfma_f32_32x32x16_bf16 {v(z,16)}, {v(ONES,4)}, {v(PB+4,4)}, {v(z,16)}')
    stamp(A, 4)
    if side_jobs:
        A.wait_vm('ksg')
    A.I('s_barrier')
    A.I('v_bfe_u32 v4, v1, 2, 2')
    A.I('v_mul_u32_u24 v4, 576, v4')
    A.I('v_and_b32 v5, 3, v1')
    A.I('v_lshl_add_u32 v4, v5, 2, v4')
    A.I(f's_mul_i32 s36, s{SW}, 4608')
    A.I('v_add_u32 v4, s36, v4')
    A.I('v_bfe_u32 v5, v1, 4, 1')
    A.I('v_lshl_add_u32 v8, v5, 4, v4')
    A.I('v_lshl_add_u32 v4, v5, 8, v4')
    A.I('v_lshrrev_b32 v5, 5, v1')
    A.I('v_lshl_add_u32 v4, v5, 6, v4')
    for hh in range(2):
        kv = KV if hh == 0 else KV2 + 8
        for r in range(8):
            d = 8*(r >> 2) + (r & 3)
            A.I(f'ds_write_b32 v4, {v(kv+r)} offset:{2304*hh + 16*d}')
        A.I(f'ds_write_b32 v8, {v(L+16*hh)} offset:{2304*hh + 512}')
    if side_jobs:
        ksmod.ks_compute(A, SW, WS, KSL, 176)
    A.wait_lg()
    A.I('s_barrier')
    A.I('v_lshrrev_b32 v3, 7, v0')
    A.I('v_mul_u32_u24 v3, 576, v3')
    A.I('v_and_b32 v4, 127, v0')
    A.I('v_lshl_add_u32 v3, v4, 2, v3')
    R = 16
    for i in range(4):
        for w_ in range(4):
            A.I(f'ds_read_b32 {v(R+4*i+w_)}, v3 offset:{w_*4608 + (i>>1)*2304 + (i&1)*1152}', tag=f'r{i}')
    A.I('v_lshrrev_b32 v4, 5, v1')
    A.I('v_mul_u32_u24 v4, 2304, v4')
    A.I('v_bfe_u32 v5, v1, 3, 2')
    A.I('v_mul_u32_u24 v5, 576, v5')
    A.I('v_add_u32 v4, v4, v5')
    A.I('v_and_b32 v5, 7, v1')
    A.I('v_lshl_add_u32 v4, v5, 2, v4')
    A.I('v_add_u32 v4, 512, v4')
    for w_ in range(4):
        A.I(f'ds_read_b32 {v(R+16+w_)}, v4 offset:{w_*4608}', tag='rz')
    A.I(f's_mul_i32 s36, s{SHP}, 4608')
    A.I(f's_add_u32 s36, s36, {KVF}')
    for i in range(4):
        A.wait_lg(f'r{i}')
        A.I(f'v_add_f32 {v(R+4*i)}, {v(R+4*i)}, {v(R+4*i+1)}')
        A.I(f'v_add_f32 {v(R+4*i+2)}, {v(R+4*i+2)}, {v(R+4*i+3)}')
        A.I(f'v_add_f32 {v(R+4*i)}, {v(R+4*i)}, {v(R+4*i+2)}')
        A.I(f'buffer_atomic_add_f32 {v(R+4*i)}, v3, {srd(WS)}, s36 offen offset:{(i>>1)*2304 + (i&1)*1152}')
    stamp(A, 5)
    stamp_flush(A, 2, WS, SW)
    A.I(f's_cmp_lg_u32 s{SW}, 0')
    A.I('s_cbranch_scc1 k1_kernel_end')
    A.wait_lg()
    A.I(f'v_add_f32 {v(R+16)}, {v(R+16)}, {v(R+17)}')
    A.I(f'v_add_f32 {v(R+18)}, {v(R+18)}, {v(R+19)}')
    A.I(f'v_add_f32 {v(R+16)}, {v(R+16)}, {v(R+18)}')
    A.I(f'buffer_atomic_add_f32 {v(R+16)}, v4, {srd(WS)}, s36 offen')
    K.end()
    return K
```

```python
from common import *

PART = 65536

def tr_addr_perm(A, dst, t0, t1):
    A.I(f'v_bfe_u32 {v(t0)}, v1, 2, 2')
    A.I(f'v_lshrrev_b32 {v(t1)}, 5, v1')
    A.I(f'v_lshl_add_u32 {v(dst)}, {v(t1)}, 2, {v(t0)}')
    A.I(f'v_lshlrev_b32 {v(dst)}, 7, {v(dst)}')
    A.I(f'v_lshrrev_b32 {v(t0)}, 1, {v(t0)}')
    A.I(f'v_lshlrev_b32 {v(t0)}, 2, {v(t0)}')
    A.I(f'v_bfe_u32 {v(t1)}, v1, 4, 1')
    A.I(f'v_lshlrev_b32 {v(t1)}, 1, {v(t1)}')
    A.I(f'v_xor_b32 {v(t0)}, {v(t0)}, {v(t1)}')
    A.I(f'v_bfe_u32 {v(t1)}, v1, 1, 1')
    A.I(f'v_xor_b32 {v(t0)}, {v(t0)}, {v(t1)}')
    A.I(f'v_lshl_add_u32 {v(dst)}, {v(t0)}, 4, {v(dst)}')
    A.I(f'v_and_b32 {v(t1)}, 1, v1')
    A.I(f'v_lshl_add_u32 {v(dst)}, {v(t1)}, 3, {v(dst)}')

def dma_row_off(A, dst, t0, t1, pitch):
    A.I(f'v_lshrrev_b32 {v(dst)}, 3, v1')
    A.I(f'v_and_b32 {v(t0)}, 7, v1')
    A.I(f'v_bfe_u32 {v(t1)}, {v(dst)}, 1, 1')
    A.I(f'v_lshlrev_b32 {v(t1)}, 2, {v(t1)}')
    A.I(f'v_xor_b32 {v(t0)}, {v(t0)}, {v(t1)}')
    A.I(f'v_mul_u32_u24 {v(dst)}, {pitch}, {v(dst)}')
    A.I(f'v_lshl_add_u32 {v(dst)}, {v(t0)}, 4, {v(dst)}')

def tile64_decode(A, SRT, SNT):
    A.I('s_and_b32 s24, s2, 7')
    A.I('s_lshr_b32 s25, s2, 3')
    A.I('s_lshl_b32 s24, s24, 2')
    A.I('s_lshr_b32 s26, s25, 3')
    A.I(f's_add_u32 s{SRT}, s24, s26')
    A.I(f's_and_b32 s{SNT}, s25, 7')

def write_partials(A, ACC, SW, t0, t1):
    A.I(f'v_and_b32 {v(t0)}, 31, v1')
    A.I(f'v_mul_u32_u24 {v(t0)}, 272, {v(t0)}')
    A.I(f'v_lshrrev_b32 {v(t1)}, 5, v1')
    A.I(f'v_lshl_add_u32 {v(t0)}, {v(t1)}, 4, {v(t0)}')
    A.I(f's_mul_i32 s40, s{SW}, 17408')
    A.I(f's_add_u32 s40, s40, {PART}')
    A.I(f'v_add_u32 {v(t0)}, s40, {v(t0)}')
    for mbl in range(2):
        for nb in range(2):
            for g in range(4):
                r = ACC + 16*(2*mbl+nb) + 4*g
                A.I(f'ds_write_b128 {v(t0)}, {v(r,4)} offset:{mbl*32*272 + nb*128 + g*32}')

def read_partials(A, R, t0, t1):
    A.I(f'v_lshrrev_b32 {v(t0)}, 3, v0')
    A.I(f'v_mul_u32_u24 {v(t0)}, 272, {v(t0)}')
    A.I(f'v_and_b32 {v(t1)}, 7, v0')
    A.I(f'v_lshl_add_u32 {v(t0)}, {v(t1)}, 5, {v(t0)}')
    A.I(f'v_add_u32 {v(t0)}, {PART}, {v(t0)}')
    for w_ in range(4):
        for half in range(2):
            for q in range(2):
                A.I(f'ds_read_b128 {v(R+16*w_+8*half+4*q,4)}, {v(t0)} offset:{w_*17408 + half*32*272 + q*16}', tag=f'p{w_}')
    A.wait_lg('p1')
    for e in range(16):
        A.I(f'v_add_f32 {v(R+e)}, {v(R+e)}, {v(R+16+e)}')
    A.wait_lg('p3')
    for e in range(16):
        A.I(f'v_add_f32 {v(R+32+e)}, {v(R+32+e)}, {v(R+48+e)}')
    for e in range(16):
        A.I(f'v_add_f32 {v(R+e)}, {v(R+e)}, {v(R+32+e)}')

def unpack8(A, dst, src):
    for d in range(4):
        A.I(f'v_lshlrev_b32 {v(dst+2*d)}, 16, {v(src+d)}')
        A.I(f'v_and_b32 {v(dst+2*d+1)}, 0xffff0000, {v(src+d)}')

def gen_k23():
    K = Kern('k23_kernel', 256, lds=PART + 4*17408, vgprs=256, agprs=64)
    A = K.A
    K.begin()
    stamp(A, 0)
    P = load_ptrs(A, ['x', 'wo', 'ws'], 4)
    SW = 16; WS = 20; WO = 28; XS = 32
    wave_id(A, SW, 1)
    A.I('v_and_b32 v1, 63, v0')
    A.I('v_lshlrev_b32 v2, 4, v1')
    SRT, SNT = 17, 18
    tile64_decode(A, SRT, SNT)
    A.wait_lg()
    make_srd(A, WS, P['ws'], NBYTES['ws'])
    make_srd(A, WO, P['wo'], NBYTES['wo'])
    make_srd(A, XS, P['x'], NBYTES['x'])
    dma_row_off(A, 3, 4, 5, 1024)
    tr_addr_perm(A, 4, 5, 6)
    A.I(f's_lshl_b32 s36, s{SW}, 14')
    A.I('v_add_u32 v4, s36, v4')
    A.I('v_xor_b32 v5, 64, v4')
    A.I('v_and_b32 v7, 31, v1')
    A.I('v_lshrrev_b32 v8, 5, v1')
    A.I('v_lshlrev_b32 v6, 4, v7')
    A.I('v_lshl_add_u32 v6, v8, 8, v6')
    A.I('v_lshlrev_b32 v9, 4, v8')
    A.I('v_add_u32 v9, 512, v9')
    A.I('v_cmp_gt_u32 vcc, 16, v7')
    A.I('v_cndmask_b32 v6, v9, v6, vcc')
    A.I(f's_lshl_b32 s37, s{SW}, 17')
    A.I(f's_lshl_b32 s38, s{SNT}, 7')
    A.I('s_add_u32 s37, s37, s38')
    A.I(f's_mul_i32 s38, s{SW}, {8*2304}')
    A.I(f's_add_u32 s38, s38, {KVF}')
    A.I(f's_lshl_b32 s39, s{SRT}, 17')
    A.I(f's_lshl_b32 s41, s{SW}, 14')
    A.I('s_add_u32 s39, s39, s41')
    A.I(f's_add_u32 s39, s39, {PQ}')
    KR = 16
    KB = 80
    DN = 88
    OF = 120
    WFR = 128
    ACC = 136
    def issue_head(hh):
        sl = hh % 4
        for q in range(4):
            A.I(f's_add_u32 s42, s38, {hh*2304 + q*576}')
            A.I(f'buffer_load_dwordx4 {v(KR+16*sl+4*q,4)}, v6, {srd(WS)}, s42 offen', tag=f'h{hh}')
        for mbl in range(2):
            A.I(f's_add_u32 s42, s39, {mbl*65536 + hh*2048}')
            A.I(f'buffer_load_dwordx4 {a(16*sl+8*mbl,4)}, v2, {srd(WS)}, s42 offen', tag=f'h{hh}')
            A.I(f'buffer_load_dwordx4 {a(16*sl+8*mbl+4,4)}, v2, {srd(WS)}, s42 offen offset:1024', tag=f'h{hh}')
        for half in range(2):
            A.I(f's_add_u32 m0, s36, {hh*2048 + half*1024}')
            A.I(f's_add_u32 s42, s37, {(hh*16 + half*8)*1024}')
            A.I(f'buffer_load_dwordx4 v3, {srd(WO)}, s42 offen lds', tag=f'h{hh}')
    for hh in range(4):
        issue_head(hh)
    for r in range(64):
        A.I(f'v_mov_b32 {v(ACC+r)}, 0')
    stamp(A, 1)
    A.I('v_mov_b32 v10, 0x358637bd')
    for hh in range(8):
        sl = hh % 4
        A.wait_vm(f'h{hh}')
        if hh == 0: stamp(A, 2)
        for nb in range(2):
            A.I(f'ds_read_b64_tr_b16 {v(WFR+4*nb,2)}, {v(4+nb)} offset:{hh*2048}', tag=f'wf{hh}')
            A.I(f'ds_read_b64_tr_b16 {v(WFR+4*nb+2,2)}, {v(4+nb)} offset:{hh*2048+1024}', tag=f'wf{hh}')
        for d in range(8):
            A.I(f'v_cvt_pk_bf16_f32 {v(KB+d)}, {v(KR+16*sl+2*d)}, {v(KR+16*sl+2*d+1)}')
        for mbl in range(2):
            A.I(f'v_mfma_f32_32x32x16_bf16 {v(DN+16*mbl,16)}, {v(KB,4)}, {a(16*sl+8*mbl,4)}, 0')
        for mbl in range(2):
            A.I(f'v_mfma_f32_32x32x16_bf16 {v(DN+16*mbl,16)}, {v(KB+4,4)}, {a(16*sl+8*mbl+4,4)}, {v(DN+16*mbl,16)}')
        if hh + 4 < 8:
            issue_head(hh + 4)
        for mbl in range(2):
            d0 = DN + 16*mbl
            A.I(f'v_add_f32 {v(d0+8)}, {v(d0+8)}, v10')
            A.I(f'v_rcp_f32 {v(d0+8)}, {v(d0+8)}')
            for r in range(8):
                A.I(f'v_mul_f32 {v(d0+r)}, {v(d0+r)}, {v(d0+8)}')
            for d in range(4):
                A.I(f'v_cvt_pk_bf16_f32 {v(OF+4*mbl+d)}, {v(d0+2*d)}, {v(d0+2*d+1)}')
        A.wait_lg(f'wf{hh}')
        for mbl in range(2):
            for nb in range(2):
                acc = ACC + 16*(2*mbl+nb)
                A.I(f'v_mfma_f32_32x32x16_bf16 {v(acc,16)}, {v(WFR+4*nb,4)}, {v(OF+4*mbl,4)}, {v(acc,16)}')
    stamp(A, 3)
    XR, GA, G2 = 16, 24, 32
    A.I('v_lshrrev_b32 v6, 3, v0')
    A.I('v_and_b32 v7, 7, v0')
    A.I('v_lshlrev_b32 v8, 10, v6')
    A.I('v_lshl_add_u32 v8, v7, 4, v8')
    A.I(f's_lshl_b32 s42, s{SRT}, 16')
    A.I(f's_lshl_b32 s43, s{SNT}, 7')
    A.I('s_add_u32 s42, s42, s43')
    A.I('s_add_u32 s43, s42, 32768')
    A.I(f'buffer_load_dwordx4 {v(XR,4)}, v8, {srd(XS)}, s42 offen', tag='ex')
    A.I(f'buffer_load_dwordx4 {v(XR+4,4)}, v8, {srd(XS)}, s43 offen', tag='ex')
    A.I('v_lshlrev_b32 v9, 5, v7')
    A.I(f's_lshl_b32 s44, s{SNT}, 8')
    A.I(f's_add_u32 s45, s44, {MODV + 1024*4}')
    A.I(f's_add_u32 s44, s44, {MODV + 2048*4}')
    for q in range(2):
        A.I(f'buffer_load_dwordx4 {v(GA+4*q,4)}, v9, {srd(WS)}, s45 offen offset:{16*q}', tag='ex')
        A.I(f'buffer_load_dwordx4 {v(G2+4*q,4)}, v9, {srd(WS)}, s44 offen offset:{16*q}', tag='ex')
    write_partials(A, ACC, SW, 11, 12)
    A.wait_lg()
    A.I('s_barrier')
    R = 136
    read_partials(A, R, 11, 12)
    A.wait_vm('ex')
    stamp(A, 4)
    XF = 48
    PK = 56
    ST = 60
    A.I('v_lshrrev_b32 v11, 1, v7')
    A.I('v_lshlrev_b32 v11, 10, v11')
    A.I('v_and_b32 v12, 1, v7')
    A.I('v_lshl_add_u32 v11, v12, 9, v11')
    A.I('v_lshl_add_u32 v11, v6, 4, v11')
    A.I(f's_lshl_b32 s46, s{SRT}, 16')
    A.I(f's_lshl_b32 s47, s{SNT}, 12')
    A.I('s_add_u32 s46, s46, s47')
    A.I(f's_add_u32 s46, s46, {A2}')
    A.I('v_lshlrev_b32 v12, 6, v6')
    A.I(f's_lshl_b32 s47, s{SRT}, 12')
    A.I(f's_lshl_b32 s48, s{SNT}, 3')
    A.I('s_add_u32 s47, s47, s48')
    A.I(f's_add_u32 s47, s47, {STATS}')
    A.I(f's_add_u32 s42, s42, {X1}')
    A.I(f's_add_u32 s43, s43, {X1}')
    A.I('v_cmp_eq_u32 s[50:51], 0, v7')
    for half in range(2):
        unpack8(A, XF, XR+4*half)
        for e in range(8):
            A.I(f'v_fmac_f32 {v(XF+e)}, {v(GA+e)}, {v(R+8*half+e)}')
        for d in range(4):
            A.I(f'v_cvt_pk_bf16_f32 {v(PK+d)}, {v(XF+2*d)}, {v(XF+2*d+1)}')
        A.I(f'buffer_store_dwordx4 {v(PK,4)}, v8, {srd(WS)}, s{42+half} offen')
        A.I(f'v_add_f32 {v(ST)}, {v(XF)}, {v(XF+1)}')
        A.I(f'v_mul_f32 {v(ST+1)}, {v(XF)}, {v(XF)}')
        for e in range(2, 8):
            A.I(f'v_add_f32 {v(ST)}, {v(ST)}, {v(XF+e)}')
        for e in range(1, 8):
            A.I(f'v_fmac_f32 {v(ST+1)}, {v(XF+e)}, {v(XF+e)}')
        for e in range(8):
            A.I(f'v_mul_f32 {v(XF+e)}, {v(XF+e)}, {v(G2+e)}')
        for d in range(4):
            A.I(f'v_cvt_pk_bf16_f32 {v(PK+4+4*0+d+8)}, {v(XF+2*d)}, {v(XF+2*d+1)}')
        if half == 1: A.I('s_add_u32 s46, s46, 32768')
        A.I(f'buffer_store_dwordx4 {v(PK+12,4)}, v11, {srd(WS)}, s46 offen')
        for mode in ('quad_perm:[1,0,3,2]', 'quad_perm:[2,3,0,1]', 'row_half_mirror'):
            for q in range(2):
                A.I(f'v_add_f32_dpp {v(ST+q)}, {v(ST+q)}, {v(ST+q)} {mode} row_mask:0xf bank_mask:0xf')
        A.I('s_mov_b64 s[52:53], exec')
        A.I('s_mov_b64 exec, s[50:51]')
        A.I(f'buffer_store_dwordx2 {v(ST,2)}, v12, {srd(WS)}, s47 offen offset:{2048*half}')
        A.I('s_mov_b64 exec, s[52:53]')
    stamp(A, 5)
    stamp_flush(A, 3, WS, SW)
    K.end()
    return K
```

```python
import os
from common import *

def gen_k4():
    RING = 28672
    UTL = 4*RING
    K = Kern('k4_kernel', 256, lds=UTL + 2048, vgprs=256, agprs=128)
    A = K.A
    K.begin()
    stamp(A, 0)
    P = load_ptrs(A, ['ws'], 4)
    SW = 16; WS = 20
    wave_id(A, SW, 1)
    A.I('v_and_b32 v1, 63, v0')
    A.I('v_lshlrev_b32 v2, 4, v1')
    A.I('s_and_b32 s24, s2, 7')
    A.I('s_lshr_b32 s25, s2, 3')
    A.I('s_lshr_b32 s26, s25, 4')
    A.I('s_lshl_b32 s24, s24, 1')
    A.I('s_add_u32 s24, s24, s26')
    A.I('s_and_b32 s25, s25, 15')
    if os.environ.get('EXP_FT'): A.I(f"s_and_b32 s25, s25, {os.environ['EXP_FT']}")
    A.I('s_lshl_b32 s26, s24, 2')
    A.I(f's_add_u32 s26, s26, s{SW}')
    SMB, SFT = 26, 25
    A.I(f's_lshl_b32 s27, s{SMB}, 15')
    A.I(f's_add_u32 s27, s27, {A2}')
    A.I(f's_mul_i32 s28, s{SFT}, {32*7168}')
    A.I(f's_mul_i32 s29, s{SW}, 7168')
    A.I('s_add_u32 s28, s28, s29')
    A.I(f's_add_u32 s28, s28, {WF4}')
    A.wait_lg()
    make_srd(A, WS, P['ws'], NBYTES['ws'])
    ACC = 16
    WR = 128
    def chunk_ops(c):
        sl = c % 4
        ops = []
        for b in range(7):
            pre = []
            if b in (0, 4):
                pre = [f's_add_u32 m0, s29, {sl*RING + b*1024}', f's_add_u32 s32, s28, {c*4*7168 + b*1024}']
            ops.append(pre + [f'buffer_load_dwordx4 v2, {srd(WS)}, s32 offen offset:{(b & 3)*1024} lds'])
        for q in range(4):
            pre = [f's_add_u32 s33, s27, {c*4096}'] if q == 0 else []
            ops.append(pre + [f'buffer_load_dwordx4 {a(16*c+4*q,4)}, v2, {srd(WS)}, s33 offen offset:{q*1024}'])
        return ops
    def emit_op(op, tag, inloop=False):
        if inloop and os.environ.get('EXP_NOVM'): return
        for x in op: A.I(x, tag=tag)
    A.I(f's_mul_i32 s33, s{SFT}, 1792')
    A.I(f's_add_u32 s33, s33, {UT}')
    A.I(f's_and_b32 s34, s{SW}, 1')
    A.I('s_lshl_b32 s34, s34, 10')
    A.I('s_add_u32 s33, s33, s34')
    A.I(f's_add_u32 m0, s34, {UTL}')
    for op in chunk_ops(0)[:0]: pass
    A.I(f'buffer_load_dwordx4 v2, {srd(WS)}, s33 offen lds', tag='c0')
    for op in chunk_ops(0): emit_op(op, 'c0')
    for op in chunk_ops(1): emit_op(op, 'c1')
    ST = 184
    A.I('v_and_b32 v3, 31, v1')
    A.I('v_lshlrev_b32 v3, 6, v3')
    A.I(f's_lshl_b32 s33, s{SMB}, 11')
    A.I(f's_add_u32 s33, s33, {STATS}')
    for q in range(4):
        A.I(f'buffer_load_dwordx4 {v(ST+4*q,4)}, v3, {srd(WS)}, s33 offen offset:{16*q}', tag='st')
    stamp(A, 1)
    for r in range(112):
        A.I(f'v_mov_b32 {v(ACC+r)}, 0')
    A.I('v_add_u32 v7, 0x10000, v2')

    def lds_reads(ks, lo=0, hi=7):
        c = ks >> 2; sl = c % 4
        b0 = WR + 28*(ks & 1)
        for b in range(lo, hi):
            off = sl*RING + (ks & 3)*7168 + b*1024
            if off < 65536:
                A.I(f'ds_read_b128 {v(b0+4*b,4)}, v2 offset:{off}', tag=f'w{ks}')
            else:
                A.I(f'ds_read_b128 {v(b0+4*b,4)}, v7 offset:{off-65536}', tag=f'w{ks}')
    A.wait_vm('c0')
    A.I('s_barrier')
    stamp(A, 2)
    lds_reads(0)
    pend = []
    RS, NM = 200, 202
    def stats():
        A.I(f'v_pk_add_f32 {v(RS,2)}, {v(ST,2)}, {v(ST+2,2)}')
        A.I(f'v_pk_add_f32 {v(NM,2)}, {v(ST+4,2)}, {v(ST+6,2)}')
        for e in (8, 12):
            A.I(f'v_pk_add_f32 {v(RS,2)}, {v(RS,2)}, {v(ST+e,2)}')
            A.I(f'v_pk_add_f32 {v(NM,2)}, {v(NM,2)}, {v(ST+e+2,2)}')
        A.I(f'v_pk_add_f32 {v(RS,2)}, {v(RS,2)}, {v(NM,2)}')
        A.I('s_mov_b32 s34, 0x3b000000')
        A.I(f'v_mul_f32 {v(RS)}, s34, {v(RS)}')
        A.I(f'v_mul_f32 {v(RS+1)}, s34, {v(RS+1)}')
        A.I(f'v_fma_f32 {v(RS+1)}, -{v(RS)}, {v(RS)}, {v(RS+1)}')
        A.I(f'v_max_f32 {v(RS+1)}, 0, {v(RS+1)}')
        A.I(f'v_add_f32 {v(RS+1)}, 0x3727c5ac, {v(RS+1)}')
        A.I(f'v_rsq_f32 {v(RS+1)}, {v(RS+1)}')
        A.I(f'v_mul_f32 {v(NM)}, {v(RS)}, {v(RS+1)}')
        A.I(f'v_sub_f32 {v(NM)}, 0, {v(NM)}')
        A.I(f'v_mov_b32 {v(RS)}, {v(RS+1)}')
    for ks in range(32):
        c = ks >> 2; nxt = ks + 1
        if (ks & 3) == 0 and c + 2 < 8:
            pend += [(op, f'c{c+2}') for op in chunk_ops(c + 2)]
        A.wait_lg(f'w{ks}')
        if nxt < 32 and (nxt & 3) == 0:
            A.wait_vm(f'c{nxt>>2}')
            A.I('s_barrier')
        b0 = WR + 28*(ks & 1)
        for b in range(7):
            A.I(f'v_mfma_f32_32x32x16_bf16 {v(ACC+16*b,16)}, {v(b0+4*b,4)}, {a(4*ks,4)}, {v(ACC+16*b,16)}')
            if nxt < 32 and b < 4:
                lds_reads(nxt, 2*b, min(2*b+2, 7))
            if b in (1, 3, 5) and pend:
                emit_op(*pend.pop(0), inloop=True)
        if ks == 28:
            stats()
    assert not pend
    stamp(A, 3)
    A.I('v_lshrrev_b32 v3, 5, v1')
    A.I('v_lshlrev_b32 v3, 4, v3')
    A.I(f'v_add_u32 v3, {UTL}, v3')
    A.I(f's_mul_i32 s34, s{SMB}, {112*1024}')
    A.I(f's_mul_i32 s35, s{SFT}, 7168')
    A.I('s_add_u32 s34, s34, s35')
    A.I(f's_add_u32 s34, s34, {HID}')
    A.I('s_add_u32 s35, s34, 4096')
    UB = WR
    PK = 192
    def ut_reads(b):
        base = UB + 32*(b & 1)
        for g in range(4):
            A.I(f'ds_read_b128 {v(base+4*g,4)}, v3 offset:{b*256 + g*32}', tag=f'u{b}')
            A.I(f'ds_read_b128 {v(base+16+4*g,4)}, v3 offset:{b*256 + 128 + g*32}', tag=f'u{b}')
    ut_reads(0)
    for b in range(7):
        if b + 1 < 7: ut_reads(b + 1)
        A.wait_lg(f'u{b}')
        base = UB + 32*(b & 1); acc = ACC + 16*b
        for r in range(0, 16, 2):
            A.I(f'v_pk_fma_f32 {v(base+r,2)}, {v(NM,2)}, {v(base+r,2)}, {v(base+16+r,2)} op_sel_hi:[0,1,1]')
        for r in range(0, 16, 2):
            A.I(f'v_pk_fma_f32 {v(acc+r,2)}, {v(RS,2)}, {v(acc+r,2)}, {v(base+r,2)} op_sel_hi:[0,1,1]')
        for r in range(8):
            A.I(f'v_max_f32 {v(acc+r)}, 0, {v(acc+r)}')
        for r in range(0, 8, 2):
            A.I(f'v_pk_mul_f32 {v(acc+r,2)}, {v(acc+r,2)}, {v(acc+8+r,2)}')
        pk = PK + 4*(b & 1)
        for d in range(4):
            A.I(f'v_cvt_pk_bf16_f32 {v(pk+d)}, {v(acc+2*d)}, {v(acc+2*d+1)}')
        A.I(f'buffer_store_dwordx4 {v(pk,4)}, v2, {srd(WS)}, s{34 + (b >> 2)} offen offset:{(b & 3)*1024}')
    stamp(A, 4)
    stamp(A, 5)
    stamp_flush(A, 4, WS, SW)
    K.end()
    return K
```

```python
from common import *
from k23 import PART, tr_addr_perm, dma_row_off, tile64_decode, write_partials, read_partials, unpack8

def gen_k5():
    K = Kern('k5_kernel', 256, lds=PART + 4*17408, vgprs=256, agprs=64)
    A = K.A
    K.begin()
    stamp(A, 0)
    P = load_ptrs(A, ['wd', 'out', 'ws'], 4)
    SW = 16; WS = 20; WD = 28; OUT = 32
    wave_id(A, SW, 1)
    A.I('v_and_b32 v1, 63, v0')
    A.I('v_lshlrev_b32 v2, 4, v1')
    SRT, SNT = 17, 18
    tile64_decode(A, SRT, SNT)
    A.wait_lg()
    make_srd(A, WS, P['ws'], NBYTES['ws'])
    make_srd(A, WD, P['wd'], NBYTES['wd'])
    make_srd(A, OUT, P['out'], NBYTES['out'])
    dma_row_off(A, 3, 4, 5, 1024)
    tr_addr_perm(A, 4, 5, 6)
    A.I(f's_lshl_b32 s36, s{SW}, 14')
    A.I('v_add_u32 v4, s36, v4')
    A.I('v_xor_b32 v5, 64, v4')
    NS = 28; D = 8
    A.I(f's_mul_i32 s37, s{SW}, {NS*16*1024}')
    A.I(f's_lshl_b32 s38, s{SNT}, 7')
    A.I('s_add_u32 s37, s37, s38')
    A.I(f's_mul_i32 s38, s{SRT}, {2*112*1024}')
    A.I(f's_mul_i32 s39, s{SW}, {NS*1024}')
    A.I('s_add_u32 s38, s38, s39')
    A.I(f's_add_u32 s38, s38, {HID}')
    A.I(f's_add_u32 s39, s38, {112*1024}')
    WFR = 16
    ACC = 48
    def issue(ks):
        sl = ks % D
        for half in range(2):
            A.I(f's_add_u32 m0, s36, {sl*2048 + half*1024}')
            A.I(f's_add_u32 s42, s37, {(ks*16 + half*8)*1024}')
            A.I(f'buffer_load_dwordx4 v3, {srd(WD)}, s42 offen lds', tag=f'k{ks}')
        for mbl in range(2):
            A.I(f's_add_u32 s42, s{38+mbl}, {ks*1024}')
            A.I(f'buffer_load_dwordx4 {a(8*sl+4*mbl,4)}, v2, {srd(WS)}, s42 offen', tag=f'k{ks}')
    def reads(ks):
        sl = ks % D; b = WFR + 8*(ks & 1)
        for nb in range(2):
            A.I(f'ds_read_b64_tr_b16 {v(b+4*nb,2)}, {v(4+nb)} offset:{sl*2048}', tag=f'w{ks}')
            A.I(f'ds_read_b64_tr_b16 {v(b+4*nb+2,2)}, {v(4+nb)} offset:{sl*2048+1024}', tag=f'w{ks}')
    for ks in range(D):
        issue(ks)
    stamp(A, 1)
    for r in range(64):
        A.I(f'v_mov_b32 {v(ACC+r)}, 0')
    A.wait_vm('k0')
    stamp(A, 2)
    reads(0)
    for ks in range(NS):
        sl = ks % D; b = WFR + 8*(ks & 1)
        A.wait_lg(f'w{ks}')
        if ks + 1 < NS:
            A.wait_vm(f'k{ks+1}')
            reads(ks + 1)
        for mbl in range(2):
            for nb in range(2):
                acc = ACC + 16*(2*mbl+nb)
                A.I(f'v_mfma_f32_32x32x16_bf16 {v(acc,16)}, {v(b+4*nb,4)}, {a(8*sl+4*mbl,4)}, {v(acc,16)}')
        if ks + D < NS:
            issue(ks + D)
    stamp(A, 3)
    XR, GB = 16, 24
    A.I('v_lshrrev_b32 v6, 3, v0')
    A.I('v_and_b32 v7, 7, v0')
    A.I('v_lshlrev_b32 v8, 10, v6')
    A.I('v_lshl_add_u32 v8, v7, 4, v8')
    A.I(f's_lshl_b32 s42, s{SRT}, 16')
    A.I(f's_lshl_b32 s43, s{SNT}, 7')
    A.I('s_add_u32 s42, s42, s43')
    A.I('s_add_u32 s43, s42, 32768')
    A.I(f's_add_u32 s44, s42, {X1}')
    A.I(f's_add_u32 s45, s43, {X1}')
    A.I(f'buffer_load_dwordx4 {v(XR,4)}, v8, {srd(WS)}, s44 offen', tag='ex')
    A.I(f'buffer_load_dwordx4 {v(XR+4,4)}, v8, {srd(WS)}, s45 offen', tag='ex')
    A.I('v_lshlrev_b32 v9, 5, v7')
    A.I(f's_lshl_b32 s44, s{SNT}, 8')
    A.I(f's_add_u32 s44, s44, {MODV + 2560*4}')
    for q in range(2):
        A.I(f'buffer_load_dwordx4 {v(GB+4*q,4)}, v9, {srd(WS)}, s44 offen offset:{16*q}', tag='ex')
    write_partials(A, ACC, SW, 11, 12)
    A.wait_lg()
    A.I('s_barrier')
    R = 136
    read_partials(A, R, 11, 12)
    A.wait_vm('ex')
    stamp(A, 4)
    XF, PK = 48, 56
    for half in range(2):
        unpack8(A, XF, XR+4*half)
        for e in range(8):
            A.I(f'v_fmac_f32 {v(XF+e)}, {v(GB+e)}, {v(R+8*half+e)}')
        for d in range(4):
            A.I(f'v_cvt_pk_bf16_f32 {v(PK+4*half+d)}, {v(XF+2*d)}, {v(XF+2*d+1)}')
        A.I(f'buffer_store_dwordx4 {v(PK+4*half,4)}, v8, {srd(OUT)}, s{42+half} offen')
    stamp(A, 5)
    stamp_flush(A, 5, WS, SW)
    K.end()
    return K
```

```python
from common import *

G_SRD, U_SRD, O_SRD, D_SRD = 40, 44, 56, 60

def ks_issue_ops(A, P, SW, WS, lds_base, b):
    make_srd(A, G_SRD, P['wg'], NBYTES['wg'])
    make_srd(A, U_SRD, P['wu'], NBYTES['wu'])
    make_srd(A, O_SRD, P['wo'], NBYTES['wo'])
    make_srd(A, D_SRD, P['wd'], NBYTES['wd'])
    A.I('s_sub_u32 s37, s2, 224')
    A.I('s_cmp_ge_u32 s2, 224')
    A.I('s_cselect_b32 s37, s37, s2')
    A.I('s_mul_i32 s48, s37, 2341')
    A.I('s_lshr_b32 s48, s48, 16')
    A.I('s_mul_i32 s49, s48, 28')
    A.I('s_sub_u32 s49, s37, s49')
    A.I(f'v_lshrrev_b32 {v(b)}, 3, v1')
    A.I(f'v_and_b32 {v(b+1)}, 7, v1')
    A.I(f'v_bfe_u32 {v(b+2)}, {v(b)}, 1, 1')
    A.I(f'v_lshlrev_b32 {v(b+2)}, 2, {v(b+2)}')
    A.I(f'v_xor_b32 {v(b+1)}, {v(b+1)}, {v(b+2)}')
    A.I(f'v_mul_u32_u24 {v(b)}, 3584, {v(b)}')
    A.I(f'v_lshl_add_u32 {v(b)}, {v(b+1)}, 4, {v(b)}')
    A.I('s_lshl_b32 s50, s48, 2')
    A.I(f's_add_u32 s50, s50, s{SW}')
    A.I(f's_mul_i32 s50, s50, {16*3584}')
    A.I('s_lshl_b32 s51, s49, 7')
    A.I('s_add_u32 s50, s50, s51')
    A.I(f's_lshl_b32 s51, s{SW}, 12')
    A.I(f's_add_u32 s51, s51, {lds_base}')
    A.I(f'v_and_b32 {v(b+1)}, 31, v1')
    A.I(f'v_lshrrev_b32 {v(b+2)}, 5, v1')
    A.I(f'v_lshlrev_b32 {v(b+2)}, 4, {v(b+2)}')
    A.I(f'v_mov_b32 {v(b+3)}, 0x7fff0000')
    A.I(f'v_cmp_eq_u32 vcc, 0, {v(b+1)}')
    A.I(f'v_mov_b32 {v(b+4)}, {2048*2}')
    A.I(f'v_cndmask_b32 {v(b+3)}, {v(b+3)}, {v(b+4)}, vcc')
    A.I(f'v_mov_b32 {v(b+4)}, {1536*2}')
    A.I(f'v_cmp_eq_u32 vcc, 1, {v(b+1)}')
    A.I(f'v_cndmask_b32 {v(b+3)}, {v(b+3)}, {v(b+4)}, vcc')
    A.I(f'v_add_u32 {v(b+3)}, {v(b+3)}, {v(b+2)}')
    A.I('s_lshl_b32 s52, s48, 7')
    A.I(f's_add_u32 s52, s52, {MODB}')
    A.I('s_lshl_b32 s38, s2, 2')
    A.I(f's_add_u32 s38, s38, s{SW}')
    A.I('s_lshl_b32 s39, s38, 9')
    A.I('s_lshl_b32 s38, s38, 11')
    GF = b + 8
    DUM = b + 56
    ops = []
    for m, R in enumerate((G_SRD, U_SRD)):
        for hh in range(2):
            ops.append(([f's_add_u32 m0, s51, {m*2048 + hh*1024}', f's_add_u32 s53, s50, {hh*8*3584}',
                         f'buffer_load_dwordx4 {v(b)}, {srd(R)}, s53 offen lds'], 'ksd'))
    for q in range(4):
        ops.append(([f'buffer_load_dwordx4 {v(GF+4*q,4)}, {v(b+3)}, {srd(WS)}, s52 offen offset:{32*q}'], 'ksg'))
    ops.append(([f'buffer_load_dwordx4 {v(DUM,4)}, v2, {srd(O_SRD)}, s39 offen'], 'ksg'))
    ops.append(([f'buffer_load_dwordx4 {v(DUM,4)}, v2, {srd(D_SRD)}, s38 offen'], 'ksg'))
    ops.append(([f'buffer_load_dwordx4 {v(DUM,4)}, v2, {srd(D_SRD)}, s38 offen offset:1024'], 'ksg'))
    return ops

def ks_compute(A, SW, WS, lds_base, b):
    skip = 'ks_skip'
    A.I('s_cmp_ge_u32 s2, 224')
    A.raw(f'    s_cbranch_scc1 {skip}')
    GF = b + 8; FR = b + 24; D = b + 40
    t0, t1, ad = b+1, b+2, b+4
    A.I(f'v_bfe_u32 {v(t0)}, v1, 2, 2')
    A.I(f'v_lshrrev_b32 {v(t1)}, 5, v1')
    A.I(f'v_lshl_add_u32 {v(ad)}, {v(t1)}, 3, {v(t0)}')
    A.I(f'v_lshlrev_b32 {v(ad)}, 7, {v(ad)}')
    A.I(f'v_lshrrev_b32 {v(t0)}, 1, {v(t0)}')
    A.I(f'v_lshlrev_b32 {v(t0)}, 2, {v(t0)}')
    A.I(f'v_bfe_u32 {v(t1)}, v1, 1, 1')
    A.I(f'v_xor_b32 {v(t0)}, {v(t0)}, {v(t1)}')
    A.I(f's_lshl_b32 s53, s{SW}, 1')
    A.I(f'v_xor_b32 {v(t0)}, s53, {v(t0)}')
    A.I(f'v_lshl_add_u32 {v(ad)}, {v(t0)}, 4, {v(ad)}')
    A.I(f'v_and_b32 {v(t1)}, 1, v1')
    A.I(f'v_lshl_add_u32 {v(ad)}, {v(t1)}, 3, {v(ad)}')
    A.I(f'v_bfe_u32 {v(t1)}, v1, 4, 1')
    A.I(f'v_lshl_add_u32 {v(ad)}, {v(t1)}, 11, {v(ad)}')
    A.I(f'v_add_u32 {v(ad)}, {lds_base}, {v(ad)}')
    tags = []
    for q in range(4):
        A.I(f'ds_read_b64_tr_b16 {v(FR+4*q,2)}, {v(ad)} offset:{4096*q}')
        A.I(f'ds_read_b64_tr_b16 {v(FR+4*q+2,2)}, {v(ad)} offset:{4096*q+512}')
    A.I('s_lshl_b32 s53, s49, 2')
    A.I(f's_add_u32 s53, s53, s{SW}')
    A.I('s_mul_i32 s54, s53, 9363')
    A.I('s_lshr_b32 s54, s54, 16')
    A.I('s_mul_i32 s55, s54, 7')
    A.I('s_sub_u32 s55, s53, s55')
    A.I('s_lshl_b32 s54, s54, 5')
    A.I('s_lshl_b32 s37, s48, 2')
    A.I('s_add_u32 s54, s54, s37')
    A.I('s_mul_i32 s54, s54, 7')
    A.I('s_add_u32 s54, s54, s55')
    A.I('s_lshl_b32 s54, s54, 10')
    A.I(f's_add_u32 s54, s54, {WF4}')
    A.wait_lg()
    for q in range(4):
        A.I(f'buffer_store_dwordx4 {v(FR+4*q,4)}, v2, {srd(WS)}, s54 offen')
        if q < 3: A.I('s_add_u32 s54, s54, 7168')
        c = '0' if q == 0 else v(D, 16)
        A.I(f'v_mfma_f32_32x32x16_bf16 {v(D,16)}, {v(GF+4*q,4)}, {v(FR+4*q,4)}, {c}')
    A.I(f'v_permlane32_swap_b32 {v(D)}, {v(D+1)}')
    A.I('s_lshl_b32 s53, s53, 8')
    A.I(f's_add_u32 s53, s53, {UT}')
    A.I(f'v_lshlrev_b32 {v(t0)}, 2, v1')
    A.I(f'buffer_atomic_add_f32 {v(D)}, {v(t0)}, {srd(WS)}, s53 offen')
    A.flush_hazards()
    A.label(skip)
```

```python
import sys
from common import *
import k0, k1, ks, k23, k4, k5

def assemble(kerns, launches, path):
    out = []
    for name, grid, lds in launches:
        out.append(f'; @launch kernel={name} grid=({grid},1,1) block=(256,1,1) lds={lds}')
    out.append('.amdgcn_target "amdgcn-amd-amdhsa--gfx950"')
    out.append('.text')
    for K in kerns:
        out.append(K.A.text())
    out.append('.section .rodata,"a"')
    for K in kerns:
        out.append('.p2align 6')
        out.append(K.descriptor())
    open(path, 'w').write('\n'.join(out))

if __name__ == '__main__':
    import common
    if len(sys.argv) > 2 and sys.argv[2] == 'prof':
        common.PROFILE = True
    kk = [k0.gen_k0(), k1.gen_k1(), k23.gen_k23(), k4.gen_k4(), k5.gen_k5()]
    assemble(kk, [(K.name, K.grid, K.lds) for K in kk], sys.argv[1])
    print('nops inserted', [K.A.nops_inserted for K in kk])
```
